```python
import torch

def _softmax(x, axis=-1):
    return torch.softmax(x, dim=axis)

def _gelu(x):
    return torch.nn.functional.gelu(x, approximate='tanh')

def _silu(x):
    return torch.nn.functional.silu(x)

def _sigmoid(x):
    return torch.sigmoid(x)

def _layernorm(x, axis=-1, eps=1e-05):
    m = x.mean(dim=axis, keepdim=True)
    v = x.var(dim=axis, keepdim=True, unbiased=False)
    return (x - m) / torch.sqrt(v + eps)

def _scatter_add(tgt, idx, src, axis=0):
    return tgt.clone().index_add_(axis, idx, src)

def _segment_sum(src, seg, n):
    out = torch.zeros((n,) + src.shape[1:], dtype=src.dtype)
    return out.index_add_(0, seg, src)

def _pad(x, pw):
    flat = tuple((v for pair in reversed(pw) for v in pair))
    return torch.nn.functional.pad(x, flat)
kernel_name = 'gated_mix__linear_attn_block__mixer_gmlp__prompt'

def setup_inputs():

    _w = lambda a: (lambda t: t.to(torch.bfloat16) if t.is_floating_point() else t)(torch.as_tensor(a))

    def _A_setup():
        B, S, D = (1, 2048, 512)
        return {'x': _w((lambda *s: torch.randn(*s, dtype=torch.bfloat16) * 0.05)(B, S, D)), 'wqkv': _w((lambda *s: torch.randn(*s, dtype=torch.bfloat16) * 1.6)(D, 3 * D)), 'wo': _w((lambda *s: torch.randn(*s, dtype=torch.bfloat16) * 0.2)(D, D))}
    _A_in = _A_setup()

    def _B_setup():
        B, S, D, F = (1, 2048, 512, 1792)
        Fh = F // 2
        return {'x': _w((lambda *s: torch.randn(*s, dtype=torch.bfloat16) * 0.05)(B, S, D)), 'w_in': _w((lambda *s: torch.randn(*s, dtype=torch.bfloat16) * 0.4)(D, 2 * Fh)), 'w_sp': _w(0.01 * (lambda *s: torch.randn(*s, dtype=torch.bfloat16) * 0.4)(S, S)), 'b_sp': _w(1.0 + 0.01 * (lambda *s: torch.randn(*s, dtype=torch.bfloat16) * 0.05)(S)), 'w_out': _w((lambda *s: torch.randn(*s, dtype=torch.bfloat16) * 0.05)(Fh, D))}
    _B_in = _B_setup()
    return {'A_x': _A_in['x'], 'A_wqkv': _A_in['wqkv'], 'A_wo': _A_in['wo'], 'B_x': _B_in['x'], 'B_w_in': _B_in['w_in'], 'B_w_sp': _B_in['w_sp'], 'B_b_sp': _B_in['b_sp'], 'B_w_out': _B_in['w_out'], 'gate_w': _w((lambda *s: torch.randn(*s, dtype=torch.bfloat16) * 0.05)(512) * 16.0)}

def reference(A_x, A_wqkv, A_wo, B_x, B_w_in, B_w_sp, B_b_sp, B_w_out, gate_w):

    def _A_ref(x, wqkv, wo):
        B, S, D = x.shape
        H = 32
        Dh = D // H
        qkv = (lambda x, *d: x.permute(*d))((x @ wqkv).reshape(B, S, 3, H, Dh), 2, 0, 3, 1, 4)
        q, k, v = (qkv[0], qkv[1], qkv[2])
        phi = lambda t: torch.where(t > 0, t + 1, torch.exp(t)) + 1e-06
        pq, pk = (phi(q), phi(k))
        kv = torch.einsum('bhsd,bhse->bhde', pk, v)
        z = torch.einsum('bhsd->bhd', pk)
        num = torch.einsum('bhqd,bhde->bhqe', pq, kv)
        den = torch.einsum('bhqd,bhd->bhq', pq, z)[..., None] + 1e-06
        o = num / den
        return (lambda x, *d: x.permute(*d))(o, 0, 2, 1, 3).reshape(B, S, D) @ wo

    def _B_ref(x, w_in, w_sp, b_sp, w_out):
        B, S, D = x.shape
        F = w_in.shape[-1]
        Fh = F // 2
        z = _gelu(torch.einsum('bsd,df->bsf', x, w_in))
        z1 = z[..., :Fh].clone()
        z2 = _layernorm(z[..., Fh:], axis=-1)
        g = torch.einsum('ts,bsf->btf', w_sp, z2) + b_sp[None, :, None]
        return torch.einsum('bsf,fd->bsd', z1 * g, w_out)
    x = A_x
    g = _sigmoid((x * gate_w).sum(-1, keepdims=True))
    a = _A_ref(x, A_wqkv, A_wo)
    b = _B_ref(x, B_w_in, B_w_sp, B_b_sp, B_w_out)
    return g * a + (1 - g) * b
```

```python
import re

TRANS = ("v_exp_f32", "v_log_f32", "v_rcp_f32", "v_rsq_f32", "v_sqrt_f32", "v_sin_f32", "v_cos_f32")
REG_RE = re.compile(r"\b([vsa])(\d+)\b|\b([vsa])\[(\d+):(\d+)\]|\b(vcc|exec|m0|scc)\b")

def regs_of(tok):
    out = []
    for m in REG_RE.finditer(tok):
        if m.group(1): out.append((m.group(1), int(m.group(2))))
        elif m.group(3): out += [(m.group(3), i) for i in range(int(m.group(4)), int(m.group(5)) + 1)]
        else: out.append((m.group(6), 0))
    return out

def split_ops(s):
    ops, cur, d = [], "", 0
    for ch in s:
        if ch == "[": d += 1
        if ch == "]": d -= 1
        if ch == "," and d == 0: ops.append(cur.strip()); cur = ""
        else: cur += ch
    if cur.strip(): ops.append(cur.strip())
    return ops

class Ins:
    def __init__(self, text):
        self.text = text
        t = text.split(";")[0].strip()
        self.is_label = t.endswith(":") or t.startswith(".") or t == ""
        self.op = t.split()[0] if t else ""
        rest = t[len(self.op):].strip()
        self.ops = split_ops(rest)
        op = self.op
        self.kind = "other"
        self.w = []; self.r = []
        if self.is_label: self.kind = "label"; return
        if op.startswith("v_mfma"):
            self.kind = "mfma"
            self.passes = 8 if "32x32" in op else 4
            self.w = regs_of(self.ops[0]); self.a = regs_of(self.ops[1]); self.b = regs_of(self.ops[2]); self.c = regs_of(self.ops[3].split()[0])
            self.r = self.a + self.b + self.c
        elif op.startswith("v_"):
            self.kind = "valu"
            self.trans = any(op.startswith(x) for x in TRANS)
            self.dpp = ("row_" in t or "quad_perm" in t or "wave_" in t or "_dpp" in op)
            if op.startswith("v_cmp"):
                self.w = regs_of(self.ops[0]); self.r = sum((regs_of(o) for o in self.ops[1:]), [])
                if op.startswith("v_cmpx"): self.w += [("exec", 0)]
            elif op.startswith("v_permlane") and "swap" in op:
                self.w = regs_of(self.ops[0]) + regs_of(self.ops[1]); self.r = list(self.w)
            elif any(op.startswith(x) for x in ("v_add_co", "v_sub_co", "v_addc_co", "v_subb_co", "v_div_scale", "v_mad_u64")):
                self.w = regs_of(self.ops[0]) + regs_of(self.ops[1]); self.r = sum((regs_of(o) for o in self.ops[2:]), [])
            else:
                self.w = regs_of(self.ops[0]); self.r = sum((regs_of(o) for o in self.ops[1:]), [])
                if op.startswith("v_fmac") or op.startswith("v_pk_fmac") or op.startswith("v_writelane") or self.dpp or op.startswith("v_dot2c"):
                    self.r += self.w
        elif op.startswith("ds_"):
            self.kind = "ds"
            if op.startswith("ds_read") or "permute" in op or "swizzle" in op or "_rtn" in op:
                self.w = regs_of(self.ops[0]); self.r = sum((regs_of(o) for o in self.ops[1:]), [])
            else:
                self.r = sum((regs_of(o) for o in self.ops), [])
        elif op.startswith("buffer_") or op.startswith("global_"):
            self.kind = "vmem"
            self.lds = bool(re.search(r"\blds\b", t)) or "load_lds" in op
            allr = sum((regs_of(o) for o in self.ops), [])
            self.wide_data = []
            if op in ("buffer_inv", "buffer_wbl2"):
                pass
            elif "load" in op and not self.lds:
                self.w = regs_of(self.ops[0]); self.r = sum((regs_of(o) for o in self.ops[1:]), [])
            else:
                self.r = allr
                if "store" in op and ("x4" in op or "x3" in op):
                    self.wide_data = regs_of(self.ops[0] if op.startswith("buffer_") else self.ops[1])
                if "atomic" in op and re.search(r"\bsc0\b", t):
                    self.w = regs_of(self.ops[0])
            if self.lds: self.r += [("m0", 0)]
        elif op.startswith("s_"):
            self.kind = "salu"
            if op == "s_nop": self.kind = "nop"; self.n = int(self.ops[0], 0) + 1
            elif op.startswith(("s_cmp", "s_cbranch", "s_branch", "s_waitcnt", "s_barrier", "s_endpgm", "s_setprio", "s_sleep", "s_bitcmp", "s_setpc")):
                self.r = sum((regs_of(o) for o in self.ops), [])
            else:
                self.w = regs_of(self.ops[0]); self.r = sum((regs_of(o) for o in self.ops[1:]), [])
                if "saveexec" in op: self.w += [("exec", 0)]

def need(p, c):
    n = 0
    pw = set(p.w); cr = set(c.r); cw = set(c.w)
    if p.kind == "valu":
        vw = {x for x in pw if x[0] in "va"}
        sw = {x for x in pw if x[0] in ("s", "vcc")}
        if c.kind == "mfma" and vw & cr: n = max(n, 2)
        if c.kind == "valu":
            if p.trans and not c.trans and vw & cr: n = max(n, 1)
            if p.trans and c.trans and vw & cr: n = max(n, 1)
            if c.op.startswith(("v_readfirstlane", "v_readlane")) and vw & cr: n = max(n, 1)
            if (c.dpp or c.op.startswith("v_permlane")) and vw & cr: n = max(n, 2)
            if sw & cr:
                n = max(n, 4 if c.op.startswith(("v_readlane", "v_writelane", "v_div_fmas")) else 2)
            if ("exec", 0) in pw:
                if c.dpp: n = max(n, 5)
                if c.op.startswith(("v_readfirstlane", "v_readlane", "v_writelane", "v_permlane")): n = max(n, 4)
            if "op_sel" in p.text and not p.op.startswith("v_pk") and vw & (cr | cw): n = max(n, 1)
            if "sdwa" in p.text and vw & (cr | cw): n = max(n, 1)
        if c.kind == "vmem" and sw & cr: n = max(n, 5)
        if c.kind == "mfma" and ("exec", 0) in pw: n = max(n, 4)
        if c.kind == "salu" and c.op.startswith("s_cbranch_vcc") and ("vcc", 0) in pw: n = max(n, 1)
    elif p.kind == "mfma":
        big = {4: 8, 8: 12}[p.passes]
        if c.kind == "mfma":
            if pw & (set(c.a) | set(c.b)): n = max(n, big)
            if pw & set(c.c):
                if not (p.w == c.c and p.passes == c.passes): n = max(n, {4: 6, 8: 10}[p.passes])
            elif pw & cw: n = max(n, big)
        elif c.kind in ("valu", "ds", "vmem"):
            if pw & (cr | cw): n = max(n, big)
            if c.kind == "valu" and set(p.c) & cw: n = max(n, {4: 3, 8: 7}[p.passes])
    elif p.kind == "salu":
        if ("m0", 0) in pw and c.kind in ("vmem", "ds") and ("m0", 0) in cr: n = max(n, 1)
    elif p.kind == "vmem":
        if p.wide_data and set(p.wide_data) & cw: n = max(n, 2 if c.kind == "valu" else 1)
    return n

class Asm:
    def __init__(self):
        self.lines = []
        self.nops_added = 0
    def e(self, text):
        for ln in text.split("\n"):
            ln = ln.strip()
            if ln: self._add(Ins(ln))
    __call__ = e
    def _add(self, ins):
        if ins.kind != "label":
            dist = 0; req = 0
            for p in reversed(self.lines):
                if p.kind == "label": continue
                if dist >= 20: break
                r = need(p, ins) - dist
                if r > req: req = r
                dist += p.n if p.kind == "nop" else 1
            while req > 0:
                k = min(req, 16)
                self.lines.append(Ins(f"s_nop {k-1}")); self.nops_added += 1
                req -= k
        self.lines.append(ins)
    def label(self, name): self.e(name + ":")
    def text(self):
        return "\n".join((l.text if l.kind == "label" else "    " + l.text) for l in self.lines) + "\n"

def kd(name, vgpr=256, sgpr=96, acc=None):
    return f""".p2align 6
.amdhsa_kernel {name}
  .amdhsa_next_free_vgpr {vgpr}
  .amdhsa_next_free_sgpr {sgpr}
  .amdhsa_accum_offset {acc or min(256, (vgpr + 3) // 4 * 4)}
  .amdhsa_group_segment_fixed_size 0
  .amdhsa_kernarg_size 96
  .amdhsa_user_sgpr_count 2
  .amdhsa_user_sgpr_kernarg_segment_ptr 1
  .amdhsa_system_sgpr_workgroup_id_x 1
.end_amdhsa_kernel
"""
```

```python
import struct, math
from asmlib import Asm, kd

def f2u(x): return struct.unpack("<I", struct.pack("<f", x))[0]
def hx(x): return "0x%x" % x

OFF_Z2N = 0x0
OFF_Z1 = 0x400000
OFF_PQ = 0x800000
OFF_U0 = 0xA00000
OFF_U1 = 0xE00000
OFF_GA = 0x1200000
OFF_KV = 0x1600000
OFF_GATE = 0x1610000
OFF_EX = 0x1620000
OFF_FLAG = 0x1680000
OFF_EPOCH = 0x16F0000
WS_BYTES = 0x1700000

GK = 2.0 * math.sqrt(2.0 / math.pi) * math.log2(math.e)
LOG2E = math.log2(math.e)

def vr(b, n): return f"v[{b}:{b+n-1}]"

def srd(a, d, lo, nbytes):
    a(f"s_mov_b32 s{d}, s{lo}\ns_mov_b32 s{d+1}, s{lo+1}\ns_mov_b32 s{d+2}, {hx(nbytes)}\ns_mov_b32 s{d+3}, 0x20000")

def gelu_pairs(a, regs, tmp, c1, c0):
    G = 4
    for i in range(0, len(regs), G):
        grp = regs[i:i+G]
        T = [tmp + 2*k for k in range(len(grp))]
        for x, t in zip(grp, T): a(f"v_pk_mul_f32 {vr(t,2)}, {vr(x,2)}, {vr(x,2)}")
        for x, t in zip(grp, T): a(f"v_pk_fma_f32 {vr(t,2)}, {vr(t,2)}, {vr(c1,2)}, {vr(c0,2)}")
        for x, t in zip(grp, T): a(f"v_pk_mul_f32 {vr(t,2)}, {vr(t,2)}, {vr(x,2)}")
        for x, t in zip(grp, T): a(f"v_exp_f32 v{t}, v{t}\nv_exp_f32 v{t+1}, v{t+1}")
        for x, t in zip(grp, T): a(f"v_pk_add_f32 {vr(t,2)}, {vr(t,2)}, 1.0 op_sel_hi:[1,0]")
        for x, t in zip(grp, T): a(f"v_rcp_f32 v{t}, v{t}\nv_rcp_f32 v{t+1}, v{t+1}")
        for x, t in zip(grp, T): a(f"v_pk_mul_f32 {vr(x,2)}, {vr(x,2)}, {vr(t,2)}")

def phi_pairs(a, regs, tmp, cl2e, ceps):
    G = 4
    for i in range(0, len(regs), G):
        grp = regs[i:i+G]
        T = [tmp + 2*k for k in range(len(grp))]
        for x, t in zip(grp, T): a(f"v_pk_mul_f32 {vr(t,2)}, {vr(x,2)}, {vr(cl2e,2)}")
        for x, t in zip(grp, T): a(f"v_exp_f32 v{t}, v{t} clamp\nv_exp_f32 v{t+1}, v{t+1} clamp")
        for x, t in zip(grp, T): a(f"v_max_f32 v{x}, 0, v{x}\nv_max_f32 v{x+1}, 0, v{x+1}")
        for x, t in zip(grp, T): a(f"v_pk_add_f32 {vr(x,2)}, {vr(x,2)}, {vr(t,2)}")
        for x, t in zip(grp, T): a(f"v_pk_add_f32 {vr(x,2)}, {vr(x,2)}, {vr(ceps,2)}")

def pack(a, dst, src, n):
    for i in range(n // 2):
        a(f"v_cvt_pk_bf16_f32 v{dst+i}, v{src+2*i}, v{src+2*i+1}")

def gen_p1(name):
    a = Asm()
    a(f".globl {name}\n.p2align 8\n.type {name},@function\n{name}:")
    a(f"s_cmp_ge_u32 s2, 256\ns_cbranch_scc1 L_end_{name}")
    a("s_load_dwordx4 s[40:43], s[0:1], 0")
    a("s_load_dwordx2 s[44:45], s[0:1], 32")
    a("s_load_dwordx2 s[46:47], s[0:1], 88")
    a("s_load_dwordx2 s[48:49], s[0:1], 64")
    VL = 1
    a("v_and_b32 v1, 63, v0\nv_lshrrev_b32 v2, 6, v0")
    a("v_readfirstlane_b32 s16, v2")
    a("s_and_b32 s17, s16, 3\ns_lshr_b32 s18, s16, 2")
    a("s_and_b32 s23, s2, 7\ns_lshr_b32 s29, s2, 3")
    a("s_lshr_b32 s30, s23, 1\ns_mul_i32 s30, s30, 30\ns_add_u32 s30, s30, s29")
    a("s_lshr_b32 s20, s30, 3")
    a("s_and_b32 s19, s23, 1\ns_lshl_b32 s19, s19, 3\ns_and_b32 s31, s30, 7\ns_add_u32 s19, s19, s31")
    a("s_lshl_b32 s21, s20, 1\ns_add_u32 s21, s21, s31\ns_and_b32 s21, s21, 7")
    a("s_lshl_b32 s27, s16, 10\ns_mov_b32 s52, 0")
    a(f"s_cmp_ge_u32 s29, 30\ns_cbranch_scc1 L_misc")
    a("v_lshrrev_b32 v3, 3, v0\nv_lshlrev_b32 v2, 10, v3")
    a("v_lshrrev_b32 v3, 4, v0\nv_xor_b32 v3, v3, v0\nv_and_b32 v3, 7, v3\nv_lshl_add_u32 v2, v3, 4, v2")
    a("v_lshrrev_b32 v4, 4, v1\nv_lshlrev_b32 v5, 2, v4\nv_and_b32 v6, 15, v1\nv_xor_b32 v5, v5, v6")
    a("v_lshrrev_b32 v4, 4, v0")
    a("s_lshl_b32 s24, s19, 17")
    a("s_cmp_ge_u32 s20, 7")
    a("s_cbranch_scc1 L_qkv_cols")
    a("s_movk_i32 s22, 3584\ns_movk_i32 s31, 128")
    a("s_lshl_b32 s26, s20, 8\ns_add_u32 s25, s26, 1792\ns_branch L_cols_done")
    a("L_qkv_cols:")
    a("s_movk_i32 s22, 3072\ns_movk_i32 s31, 1024")
    a("s_sub_u32 s20, s20, 7\ns_lshl_b32 s26, s20, 7\ns_add_u32 s25, s26, 1024")
    a("L_cols_done:")
    a("v_mul_lo_u32 v3, v4, s22\nv_and_b32 v6, 7, v5\nv_lshl_add_u32 v3, v6, 4, v3")
    a("v_lshrrev_b32 v6, 3, v5\nv_mul_lo_u32 v6, v6, s31\nv_add_u32 v3, v3, v6")
    a("s_lshl_b32 s32, s22, 5\ns_lshl_b32 s33, s22, 6")
    a("s_waitcnt lgkmcnt(0)")
    srd(a, 4, 40, 2048*512*2)
    a("s_cmp_eq_u32 s22, 3072")
    a("s_cselect_b32 s8, s42, s44\ns_cselect_b32 s9, s43, s45")
    a(f"s_lshl_b32 s10, s22, 9\ns_mov_b32 s11, 0x20000")
    srd(a, 12, 46, WS_BYTES)
    VX, VW = 2, 3
    def dma_x(it, unit):
        a(f"s_add_u32 s23, s21, {it}\ns_and_b32 s23, s23, 7\ns_lshl_b32 s34, s23, 7\ns_add_u32 s34, s34, s24")
        a(f"s_add_u32 m0, s27, {unit*16384}")
        a(f"buffer_load_dwordx4 v{VX}, s[4:7], s34 offen lds")
        a(f"s_add_u32 s34, s34, 65536\ns_add_u32 m0, s27, {unit*16384+8192}")
        a(f"buffer_load_dwordx4 v{VX}, s[4:7], s34 offen lds")
    def dma_w(it, unit, colreg):
        a(f"s_add_u32 s23, s21, {it}\ns_and_b32 s23, s23, 7\ns_mul_i32 s34, s23, s33\ns_add_u32 s34, s34, s{colreg}")
        a(f"s_add_u32 m0, s27, {unit*16384}")
        a(f"buffer_load_dwordx4 v{VW}, s[8:11], s34 offen lds")
        a(f"s_add_u32 s34, s34, s32\ns_add_u32 m0, s27, {unit*16384+8192}")
        a(f"buffer_load_dwordx4 v{VW}, s[8:11], s34 offen lds")
    VWQ = 7
    def dma_wq(it, unit):
        a(f"s_add_u32 s23, s21, {it}\ns_and_b32 s23, s23, 7\ns_mul_i32 s34, s23, s33\ns_add_u32 s34, s34, s26")
        a(f"s_add_u32 m0, s27, {unit*16384}")
        a(f"buffer_load_dwordx4 v{VWQ}, s[8:11], s34 offen lds")
    for it in range(5):
        dma_x(it, 2*it); dma_w(it, 2*it+1, 25)
    a(f"s_add_u32 s50, s46, {hx(OFF_EPOCH)}\ns_addc_u32 s51, s47, 0\ns_load_dword s28, s[50:51], 0")
    AX = 8
    AWA, AWB = 12, 13
    a("v_and_b32 v4, 31, v1\nv_lshrrev_b32 v5, 5, v1")
    a("s_lshl_b32 s23, s17, 12")
    a("v_lshrrev_b32 v6, 1, v4\nv_and_b32 v6, 7, v6\nv_xor_b32 v6, v6, v5\nv_lshlrev_b32 v6, 4, v6")
    a(f"v_lshl_add_u32 v{AX}, v4, 7, v6\nv_add_u32 v{AX}, s23, v{AX}")
    for k in range(1, 4): a(f"v_xor_b32 v{AX+k}, {32*k}, v{AX}")
    a("v_bfe_u32 v6, v1, 2, 2")
    a("v_lshl_add_u32 v14, v5, 3, v6")
    a("v_bfe_u32 v15, v1, 4, 1\nv_lshlrev_b32 v15, 2, v15\nv_and_b32 v16, 1, v1\nv_lshl_add_u32 v15, v16, 1, v15\nv_bfe_u32 v16, v1, 1, 1\nv_add_u32 v15, v15, v16")
    a("v_xor_b32 v16, s18, v6\nv_lshlrev_b32 v16, 6, v16\nv_lshl_add_u32 v16, v15, 3, v16")
    a(f"v_lshl_add_u32 v{AWA}, v14, 8, v16\nv_add_u32 v{AWA}, 16384, v{AWA}\nv_xor_b32 v{AWB}, 0x80, v{AWA}")
    ATR = 17
    a(f"v_lshlrev_b32 v{ATR}, 7, v14\nv_lshl_add_u32 v{ATR}, v15, 3, v{ATR}")
    a("v_lshrrev_b32 v16, 3, v0\nv_mul_lo_u32 v7, v16, s22\nv_bfe_u32 v16, v0, 4, 1\nv_lshlrev_b32 v16, 2, v16\nv_and_b32 v18, 7, v0\nv_xor_b32 v16, v16, v18\nv_lshl_add_u32 v7, v16, 4, v7")
    XF = 128; ACC1 = 96; ACC2 = 64; WF = 48
    TMP = 24
    def reads1(g):
        ks = g % 4; w = WF + 8 * (g % 2)
        a(f"ds_read_b128 {vr(XF+4*g,4)}, v{AX+ks}")
        a(f"ds_read_b64_tr_b16 {vr(w,2)}, v{AWA} offset:{ks*4096}")
        a(f"ds_read_b64_tr_b16 {vr(w+2,2)}, v{AWA} offset:{ks*4096+1024}")
        a(f"ds_read_b64_tr_b16 {vr(w+4,2)}, v{AWB} offset:{ks*4096}")
        a(f"ds_read_b64_tr_b16 {vr(w+6,2)}, v{AWB} offset:{ks*4096+1024}")
    def mfma(acc, g, wreg, orientB):
        x = vr(XF+4*g, 4); w = vr(wreg, 4)
        c = "0" if g == 0 else vr(acc, 16)
        A, B = (w, x) if orientB else (x, w)
        a(f"v_mfma_f32_32x32x16_bf16 {vr(acc,16)}, {A}, {B}, {c}")
    WB_UNIT = [6, 7, 8, 9, 0, 1, 2, 3]
    def stage1(orientB, isq):
        a("s_waitcnt vmcnt(16)\ns_barrier")
        reads1(0)
        issued_after = None
        for g in range(32):
            it = g // 4
            if g % 4 == 3 and g < 31:
                nit = it + 1
                def gsize(k): return 4 if (k < 8 or not isq) else 2
                n_allowed = sum(gsize(k) for k in range(nit + 1, 5 + it))
                a(f"s_waitcnt vmcnt({n_allowed}) lgkmcnt(0)\ns_barrier")
                d = 32768 if (nit % 5) else -131072
                for k in range(4): a(f"v_add_u32 v{AX+k}, {d}, v{AX+k}")
                a(f"v_add_u32 v{AWA}, {d}, v{AWA}\nv_add_u32 v{AWB}, {d}, v{AWB}")
                reads1(g + 1)
                w = WF + 8 * (g % 2)
                mfma(ACC1, g, w, orientB)
                grp = 5 + it; slot = it % 5
                if grp < 8:
                    dma_x(grp, 2*slot); mfma(ACC1+16, g, w+4, orientB); dma_w(grp, 2*slot+1, 25)
                else:
                    m = 2 * (grp - 8)
                    if isq:
                        dma_wq(m, WB_UNIT[m]); mfma(ACC1+16, g, w+4, orientB); dma_wq(m+1, WB_UNIT[m+1])
                    else:
                        dma_w(m, WB_UNIT[m], 26); mfma(ACC1+16, g, w+4, orientB); dma_w(m+1, WB_UNIT[m+1], 26)
            else:
                if g < 31:
                    reads1(g + 1); a("s_waitcnt lgkmcnt(5)")
                else:
                    a("s_waitcnt lgkmcnt(0)")
                w = WF + 8 * (g % 2)
                mfma(ACC1, g, w, orientB); mfma(ACC1+16, g, w+4, orientB)
    a("s_waitcnt lgkmcnt(0)\ns_add_u32 s28, s28, 1")
    a("s_cmp_eq_u32 s22, 3072\ns_cbranch_scc1 L_qkv")
    stage1(True, False)
    C1, C0 = 18, 20
    a(f"v_mov_b32 v{C1}, {hx(f2u(-GK*0.044715))}\nv_mov_b32 v{C1+1}, {hx(f2u(-GK*0.044715))}\nv_mov_b32 v{C0}, {hx(f2u(-GK))}\nv_mov_b32 v{C0+1}, {hx(f2u(-GK))}")
    gelu_pairs(a, [ACC1 + 2*i for i in range(16)], TMP, C1, C0)
    T = TMP
    a(f"v_pk_add_f32 {vr(T,2)}, {vr(ACC1,2)}, {vr(ACC1+2,2)}\nv_pk_add_f32 {vr(T+2,2)}, {vr(ACC1+4,2)}, {vr(ACC1+6,2)}")
    for i in range(4, 16, 2):
        a(f"v_pk_add_f32 {vr(T,2)}, {vr(T,2)}, {vr(ACC1+2*i,2)}\nv_pk_add_f32 {vr(T+2,2)}, {vr(T+2,2)}, {vr(ACC1+2*i+2,2)}")
    a(f"v_pk_add_f32 {vr(T,2)}, {vr(T,2)}, {vr(T+2,2)}\nv_add_f32 v{T}, v{T}, v{T+1}")
    a(f"v_mov_b32 v{T+1}, v{T}")
    a(f"v_permlane32_swap_b32 v{T}, v{T+1}")
    a(f"v_add_f32 v{T}, v{T}, v{T+1}\nv_mul_f32 v{T}, {hx(f2u(1/64.))}, v{T}")
    a(f"v_mov_b32 v{T+1}, v{T}")
    for i in range(16):
        d = T + 6 + 2 * (i % 4); s = T + 2 + 2 * (i % 2)
        a(f"v_pk_add_f32 {vr(d,2)}, {vr(ACC1+2*i,2)}, {vr(T,2)} neg_lo:[0,1] neg_hi:[0,1]")
        if i < 2: a(f"v_pk_mul_f32 {vr(s,2)}, {vr(d,2)}, {vr(d,2)}")
        else: a(f"v_pk_fma_f32 {vr(s,2)}, {vr(d,2)}, {vr(d,2)}, {vr(s,2)}")
    a(f"v_pk_add_f32 {vr(T+2,2)}, {vr(T+2,2)}, {vr(T+4,2)}\nv_add_f32 v{T+1}, v{T+2}, v{T+3}\nv_mov_b32 v{T+2}, v{T+1}")
    a(f"v_permlane32_swap_b32 v{T+1}, v{T+2}\nv_add_f32 v{T+1}, v{T+1}, v{T+2}")
    SCR = 4 * 16384
    a("s_barrier")
    a(f"v_and_b32 v{T+2}, 31, v1\nv_lshlrev_b32 v{T+2}, 3, v{T+2}")
    a(f"s_xor_b32 s23, s16, 4\ns_lshl_b32 s23, s23, 12\ns_add_u32 s23, s23, {SCR}\nv_add_u32 v{T+3}, s23, v{T+2}")
    a(f"ds_write_b64 v{T+3}, {vr(T,2)}")
    a(f"v_xor_b32 v{T+3}, 16384, v{T+3}")
    a("s_waitcnt vmcnt(0) lgkmcnt(0)\ns_barrier")
    a(f"ds_read_b64 {vr(T+4,2)}, v{T+3}")
    a(f"s_lshl_b32 s23, s19, 3\ns_add_u32 s23, s23, s20\ns_lshl_b32 s23, s23, 11\ns_lshl_b32 s34, s17, 9\ns_add_u32 s35, s23, s34\ns_add_u32 s35, s35, {hx(OFF_EX)}")
    a(f"v_lshlrev_b32 v{T+2}, 1, v{T+2}")
    a("s_waitcnt lgkmcnt(0)")
    a(f"v_sub_f32 v{T+6}, v{T}, v{T+4}\nv_add_f32 v{T}, v{T}, v{T+4}\nv_mul_f32 v{T+8}, 0.5, v{T}")
    a(f"v_add_f32 v{T+9}, v{T+1}, v{T+5}\nv_mul_f32 v{T+6}, v{T+6}, v{T+6}\nv_mov_b32 v{T+7}, {hx(f2u(32.0))}\nv_fma_f32 v{T+9}, v{T+6}, v{T+7}, v{T+9}")
    a(f"v_mov_b32 v{T+10}, s28\nv_not_b32 v{T+11}, v{T+10}")
    a("s_cmp_lg_u32 s18, 0\ns_cbranch_scc1 L_z_nopub")
    a("s_mov_b64 exec, 0xffffffff")
    a(f"buffer_store_dwordx4 {vr(T+8,4)}, v{T+2}, s[12:15], s35 offen sc1")
    a("s_mov_b64 exec, -1")
    a("L_z_nopub:")
    cur = [5]
    def setw(unit):
        d = (unit - cur[0]) * 16384; cur[0] = unit
        a(f"v_add_u32 v{AWA}, {d}, v{AWA}\nv_add_u32 v{AWB}, {d}, v{AWB}")
    def reads2(g):
        ks = g % 4; w = WF + 8 * (g % 2)
        if ks == 0: setw(WB_UNIT[g // 4])
        a(f"ds_read_b64_tr_b16 {vr(w,2)}, v{AWA} offset:{ks*4096}")
        a(f"ds_read_b64_tr_b16 {vr(w+2,2)}, v{AWA} offset:{ks*4096+1024}")
        a(f"ds_read_b64_tr_b16 {vr(w+4,2)}, v{AWB} offset:{ks*4096}")
        a(f"ds_read_b64_tr_b16 {vr(w+6,2)}, v{AWB} offset:{ks*4096+1024}")
    POLL_AT = 20
    PV = T + 4
    def poll_issue():
        for i in range(4):
            a(f"buffer_load_dwordx4 {vr(T+8+4*i,4)}, v{PV + (1 if i == 3 else 0)}, s[12:15], s36 offen sc1")
            if i < 2: a("s_add_u32 s36, s36, 4096")
        a("s_sub_u32 s36, s36, 8192")
    reads2(0)
    for g in range(32):
        if g == POLL_AT - 4:
            a(f"s_lshl_b32 s36, s19, 14\ns_add_u32 s36, s36, s34\ns_add_u32 s36, s36, {hx(OFF_EX)}")
            a(f"v_lshrrev_b32 v{PV}, 5, v1\nv_lshl_add_u32 v{PV}, v{PV}, 11, v{T+2}\nv_add_u32 v{PV+1}, 4096, v{T+2}")
            poll_issue()
        if g == POLL_AT:
            a("L_z_poll:")
            a("s_waitcnt vmcnt(0)")
            a(f"v_mov_b32 v{T}, s28\nv_not_b32 v{T+1}, v{T}")
            a(f"v_xor_b32 v{T+6}, v{T+10}, v{T}\nv_xor_b32 v{T+7}, v{T+11}, v{T+1}\nv_or_b32 v{T+6}, v{T+6}, v{T+7}")
            for i in range(1, 4):
                a(f"v_xor_b32 v{T+7}, v{T+10+4*i}, v{T}\nv_or_b32 v{T+6}, v{T+6}, v{T+7}\nv_xor_b32 v{T+7}, v{T+11+4*i}, v{T+1}\nv_or_b32 v{T+6}, v{T+6}, v{T+7}")
            a(f"v_cmp_ne_u32 vcc, 0, v{T+6}")
            a("s_cbranch_vccz L_z_polled")
            a("s_add_u32 s52, s52, 1\ns_cmp_gt_u32 s52, 0x20000\ns_cbranch_scc1 L_z_polled")
            poll_issue()
            a("s_branch L_z_poll")
            a("L_z_polled:")
            a(f"v_add_f32 v{T}, v{T+8}, v{T+12}\nv_add_f32 v{T}, v{T}, v{T+16}\nv_fma_f32 v{T}, v{T+20}, 0.5, v{T}\nv_mov_b32 v{T+1}, v{T}")
            a(f"v_permlane32_swap_b32 v{T}, v{T+1}\nv_add_f32 v{T}, v{T}, v{T+1}\nv_mul_f32 v{T}, {hx(f2u(1/7.))}, v{T}")
            a(f"v_mov_b32 v{T+7}, {hx(f2u(128.0))}")
            for i in range(4):
                a(f"v_sub_f32 v{T+8+4*i}, v{T+8+4*i}, v{T}\nv_mul_f32 v{T+8+4*i}, v{T+8+4*i}, v{T+8+4*i}\nv_fma_f32 v{T+9+4*i}, v{T+8+4*i}, v{T+7}, v{T+9+4*i}")
            a(f"v_add_f32 v{T+6}, v{T+9}, v{T+13}\nv_add_f32 v{T+6}, v{T+6}, v{T+17}\nv_fma_f32 v{T+6}, v{T+21}, 0.5, v{T+6}\nv_mov_b32 v{T+7}, v{T+6}")
            a(f"v_permlane32_swap_b32 v{T+6}, v{T+7}\nv_add_f32 v{T+6}, v{T+6}, v{T+7}")
            a(f"v_mov_b32 v{T+7}, {hx(f2u(1e-5))}\nv_mov_b32 v{T+8}, {hx(f2u(1/896.))}\nv_fma_f32 v{T+6}, v{T+6}, v{T+8}, v{T+7}\nv_rsq_f32 v{T+6}, v{T+6}")
            a(f"v_mul_f32 v{T}, v{T}, v{T+6}\nv_mov_b32 v{T+7}, v{T+6}\nv_mov_b32 v{T+1}, v{T}")
            for i in range(16):
                a(f"v_pk_fma_f32 {vr(ACC1+2*i,2)}, {vr(ACC1+2*i,2)}, {vr(T+6,2)}, {vr(T,2)} neg_lo:[0,0,1] neg_hi:[0,0,1]")
            pack(a, ACC1, ACC1, 32)
            a(f"v_and_b32 v{T}, 31, v1\nv_bfe_u32 v{T+1}, v1, 1, 1\nv_lshlrev_b32 v{T+1}, 2, v{T+1}\nv_bfe_u32 v{T+6}, v1, 2, 1\nv_lshl_add_u32 v{T+1}, v{T+6}, 1, v{T+1}")
            a(f"v_and_b32 v{T+6}, 1, v1\nv_add_u32 v{T+1}, v{T+1}, v{T+6}\nv_lshrrev_b32 v{T+6}, 5, v1\nv_xor_b32 v{T+1}, v{T+1}, v{T+6}")
            a(f"v_lshlrev_b32 v{T+1}, 4, v{T+1}\nv_lshl_add_u32 v{T}, v{T}, 7, v{T+1}")
            a(f"s_lshl_b32 s23, s16, 12\ns_add_u32 s23, s23, {SCR}")
            a(f"v_add_u32 v{T}, s23, v{T}")
            for u in range(4):
                if u: a(f"v_xor_b32 v{T+1}, {32*u}, v{T}")
                a(f"ds_write_b128 v{T+(1 if u else 0)}, {vr(ACC1+4*u,4)}")
            a(f"v_bfe_u32 v{T+1}, v1, 3, 1\nv_lshlrev_b32 v{T+1}, 6, v{T+1}\nv_bfe_u32 v{T+6}, v1, 2, 1\nv_lshl_add_u32 v{T+1}, v{T+6}, 4, v{T+1}")
            a(f"v_xor_b32 v{T}, v{ATR}, v{T+1}\nv_add_u32 v{T}, s23, v{T}")
            a(f"v_xor_b32 v{T+1}, 32, v{T}\nv_xor_b32 v{T+6}, 64, v{T}\nv_xor_b32 v{T+7}, 0x60, v{T}")
            a("s_waitcnt lgkmcnt(0)")
            for ct in range(2):
                for ks in range(2):
                    d = ACC1 + 16 + 8*ct + 4*ks
                    a(f"ds_read_b64_tr_b16 {vr(d,2)}, v{T + (6 if ct else 0)} offset:{ks*2048}")
                    a(f"ds_read_b64_tr_b16 {vr(d+2,2)}, v{T + (7 if ct else 1)} offset:{ks*2048+512}")
            a(f"s_lshl_b32 s23, s20, 2\ns_add_u32 s23, s23, s18\ns_lshl_b32 s23, s23, 7\ns_lshl_b32 s37, s19, 3\ns_add_u32 s23, s23, s37\ns_lshl_b32 s37, s17, 1\ns_add_u32 s23, s23, s37\ns_lshl_b32 s23, s23, 10")
            a(f"s_add_u32 s37, s23, {2*128*1024}")
            a(f"v_lshlrev_b32 v{T+8}, 4, v1")
            a("s_waitcnt lgkmcnt(0)")
            for ct in range(2):
                for ks in range(2):
                    d = ACC1 + 16 + 8*ct + 4*ks
                    a(f"buffer_store_dwordx4 {vr(d,4)}, v{T+8}, s[12:15], s{37 if ct else 23} offen offset:{ks*1024} sc1")
        if g < 31:
            reads2(g + 1); a("s_waitcnt lgkmcnt(4)")
        else:
            a("s_waitcnt lgkmcnt(0)")
        w = WF + 8 * (g % 2)
        mfma(ACC2, g, w, True); mfma(ACC2+16, g, w+4, True)
    gelu_pairs(a, [ACC2 + 2*i for i in range(16)], TMP, C1, C0)
    pack(a, ACC2, ACC2, 32)
    a(f"s_lshl_b32 s23, s19, 2\ns_add_u32 s23, s23, s17\ns_mul_i32 s23, s23, 56\ns_lshl_b32 s37, s20, 3\ns_add_u32 s23, s23, s37\ns_lshl_b32 s37, s18, 1\ns_add_u32 s23, s23, s37\ns_lshl_b32 s23, s23, 10\ns_add_u32 s23, s23, {hx(OFF_Z1)}")
    a("s_add_u32 s37, s23, 4096")
    a(f"v_lshlrev_b32 v{T+8}, 4, v1")
    for ct in range(2):
        for u in range(2):
            a(f"buffer_store_dwordx4 {vr(ACC2+8*ct+4*u,4)}, v{T+8}, s[12:15], s{37 if ct else 23} offen offset:{u*1024} sc1")
    a("s_endpgm")
    a("L_qkv:")
    stage1(False, True)
    CL, CE = 18, 20
    a(f"v_mov_b32 v{CL}, {hx(f2u(LOG2E))}\nv_mov_b32 v{CL+1}, {hx(f2u(LOG2E))}\nv_mov_b32 v{CE}, {hx(f2u(1e-6))}\nv_mov_b32 v{CE+1}, {hx(f2u(1e-6))}")
    a(f"s_lshl_b32 s36, s20, 8\ns_add_u32 s36, s36, {hx(OFF_FLAG)}")
    a(f"v_and_b32 v22, 1, v1\nv_lshlrev_b32 v22, 7, v22")
    a("buffer_load_dword v23, v22, s[12:15], s36 offen sc1")
    phi_pairs(a, [ACC1 + 2*i for i in range(8)], TMP, CL, CE)
    pack(a, ACC1, ACC1, 32)
    ONE = TMP
    for i in range(4): a(f"v_mov_b32 v{ONE+i}, 0x3f803f80")
    KVA, ZA = ACC1 + 16, ACC2 + 16
    a(f"v_mfma_f32_32x32x16_bf16 {vr(KVA,16)}, {vr(ACC1,4)}, {vr(ACC1+8,4)}, 0")
    a(f"v_mfma_f32_32x32x16_bf16 {vr(ZA,16)}, {vr(ACC1,4)}, {vr(ONE,4)}, 0")
    a(f"v_mfma_f32_32x32x16_bf16 {vr(KVA,16)}, {vr(ACC1+4,4)}, {vr(ACC1+12,4)}, {vr(KVA,16)}")
    a(f"v_mfma_f32_32x32x16_bf16 {vr(ZA,16)}, {vr(ACC1+4,4)}, {vr(ONE,4)}, {vr(ZA,16)}")
    a("s_barrier")
    a(f"v_and_b32 v{T+4}, 16, v1\nv_cmp_ne_u32 vcc, 0, v{T+4}")
    for i in range(8):
        a(f"v_cndmask_b32 v{KVA+i}, v{KVA+i}, v{KVA+8+i}, vcc")
    for i in range(8):
        a(f"v_cndmask_b32 v{ZA+i}, v{ZA+i}, v{ZA+8+i}, vcc")
    a(f"s_mul_i32 s23, s17, 4352\ns_mul_i32 s34, s18, 2176\ns_add_u32 s23, s23, s34\ns_add_u32 s23, s23, {SCR}")
    a(f"v_bfe_u32 v{T+4}, v1, 4, 1\nv_mul_u32_u24 v{T+4}, 1088, v{T+4}\nv_lshrrev_b32 v{T+5}, 5, v1\nv_lshl_add_u32 v{T+4}, v{T+5}, 5, v{T+4}\nv_add_u32 v{T+4}, s23, v{T+4}")
    a(f"v_and_b32 v{T+5}, 15, v1\nv_lshl_add_u32 v{T+6}, v{T+5}, 6, v{T+4}")
    a(f"ds_write_b128 v{T+6}, {vr(KVA,4)}\nds_write_b128 v{T+6}, {vr(KVA+4,4)} offset:16")
    a(f"v_cmp_eq_u32 vcc, 0, v{T+5}\ns_and_saveexec_b64 s[38:39], vcc")
    a(f"ds_write_b128 v{T+4}, {vr(ZA,4)} offset:1024\nds_write_b128 v{T+4}, {vr(ZA+4,4)} offset:1040")
    a("s_mov_b64 exec, -1")
    a("s_waitcnt vmcnt(0) lgkmcnt(0)\ns_barrier")
    a(f"v_lshlrev_b32 v{T+4}, 2, v0\nv_add_u32 v{T+5}, {SCR}, v{T+4}")
    for k in range(3):
        for rg in range(4):
            a(f"ds_read_b32 v{T+8+4*k+rg}, v{T+5} offset:{rg*4352 + k*2048}")
    a("L_q_zpoll:")
    a("v_cmp_ne_u32 vcc, s28, v23\ns_cbranch_vccz L_q_zok")
    a("s_add_u32 s52, s52, 1\ns_cmp_gt_u32 s52, 0x20000\ns_cbranch_scc1 L_q_zok")
    a("buffer_load_dword v23, v22, s[12:15], s36 offen sc1\ns_waitcnt vmcnt(0)\ns_branch L_q_zpoll")
    a("L_q_zok:")
    a("s_waitcnt lgkmcnt(0)")
    for k in range(3):
        b = T + 8 + 4*k
        a(f"v_add_f32 v{b}, v{b}, v{b+1}\nv_add_f32 v{b+2}, v{b+2}, v{b+3}\nv_add_f32 v{b}, v{b}, v{b+2}")
    a(f"s_mul_i32 s23, s20, 4352\ns_add_u32 s23, s23, {hx(OFF_KV)}")
    a(f"buffer_atomic_add_f32 v{T+8}, v{T+4}, s[12:15], s23 offen\nbuffer_atomic_add_f32 v{T+12}, v{T+4}, s[12:15], s23 offen offset:2048")
    a("s_cmp_lg_u32 s16, 0\ns_cbranch_scc1 L_q_s2")
    a("s_add_u32 s23, s23, 4096")
    a(f"buffer_atomic_add_f32 v{T+16}, v{T+4}, s[12:15], s23 offen")
    a("L_q_s2:")
    AQ = AWA
    a(f"v_bfe_u32 v{T+4}, v1, 3, 1\nv_xor_b32 v{T+4}, s18, v{T+4}\nv_lshl_add_u32 v{AQ}, v{T+4}, 6, v{ATR}")
    curq = [0]
    def readsq(g):
        ks = g % 4; w = WF + 4 * (g % 4)
        if ks == 0:
            u = WB_UNIT[g // 4]; d = (u - curq[0]) * 16384; curq[0] = u
            a(f"v_add_u32 v{AQ}, {d}, v{AQ}")
        a(f"ds_read_b64_tr_b16 {vr(w,2)}, v{AQ} offset:{ks*2048}")
        a(f"ds_read_b64_tr_b16 {vr(w+2,2)}, v{AQ} offset:{ks*2048+512}")
    readsq(0); readsq(1)
    for g in range(32):
        if g < 30:
            readsq(g + 2); a("s_waitcnt lgkmcnt(4)")
        else:
            a(f"s_waitcnt lgkmcnt({2*(31-g)})")
        mfma(ACC2, g, WF + 4 * (g % 4), True)
    phi_pairs(a, [ACC2 + 2*i for i in range(8)], TMP, CL, CE)
    pack(a, ACC2, ACC2, 16)
    a(f"s_lshl_b32 s23, s19, 2\ns_add_u32 s23, s23, s17\ns_lshl_b32 s23, s23, 5\ns_lshl_b32 s37, s20, 2\ns_add_u32 s23, s23, s37\ns_lshl_b32 s37, s18, 1\ns_add_u32 s23, s23, s37\ns_lshl_b32 s23, s23, 10\ns_add_u32 s23, s23, {hx(OFF_PQ)}")
    a(f"v_lshlrev_b32 v{T+8}, 4, v1")
    for u in range(2):
        a(f"buffer_store_dwordx4 {vr(ACC2+4*u,4)}, v{T+8}, s[12:15], s23 offen offset:{u*1024} sc1")
    a("s_endpgm")
    a("L_misc:")
    a("s_and_b32 s23, s2, 7\ns_lshl_b32 s19, s23, 1\ns_sub_u32 s29, s29, 30\ns_add_u32 s19, s19, s29")
    a("s_waitcnt lgkmcnt(0)")
    srd(a, 4, 40, 2048*512*2)
    srd(a, 8, 48, 1024)
    srd(a, 12, 46, WS_BYTES)
    a(f"s_add_u32 s50, s46, {hx(OFF_EPOCH)}\ns_addc_u32 s51, s47, 0\ns_load_dword s28, s[50:51], 0")
    a("v_mov_b32 v4, 0\nv_mov_b32 v5, 0\nv_mov_b32 v6, 0\nv_mov_b32 v7, 0\nv_lshlrev_b32 v2, 4, v0")
    a(f"s_mul_i32 s23, s19, 2176\ns_add_u32 s23, s23, {hx(OFF_KV)}")
    a("v_cmp_gt_u32 vcc, 136, v0\ns_and_saveexec_b64 s[38:39], vcc\ns_cbranch_execz L_m_nz")
    a("buffer_store_dwordx4 v[4:7], v2, s[12:15], s23 offen sc1")
    a("L_m_nz:\ns_mov_b64 exec, -1")
    a("s_waitcnt vmcnt(0) lgkmcnt(0)\ns_barrier")
    a("s_add_u32 s28, s28, 1")
    a("s_cmp_lg_u32 s16, 0\ns_cbranch_scc1 L_m_g")
    a(f"s_lshl_b32 s23, s19, 7\ns_add_u32 s23, s23, {hx(OFF_FLAG)}\nv_mov_b32 v4, s28\nv_mov_b32 v5, 0\ns_mov_b64 exec, 1")
    a("buffer_store_dword v4, v5, s[12:15], s23 offen sc1\ns_mov_b64 exec, -1")
    a("L_m_g:")
    a("v_lshlrev_b32 v2, 4, v1")
    a("buffer_load_dwordx4 v[4:7], v2, s[8:11], 0 offen")
    a("s_lshl_b32 s23, s19, 17\ns_lshl_b32 s34, s16, 14\ns_add_u32 s23, s23, s34")
    for i in range(16):
        if i % 4 == 0 and i: a("s_add_u32 s23, s23, 4096")
        a(f"buffer_load_dwordx4 {vr(16+4*i,4)}, v2, s[4:7], s23 offen offset:{(i%4)*1024}")
    a("s_waitcnt vmcnt(0)")
    for i in range(16):
        a(f"v_dot2_f32_bf16 v{96+i}, v{16+4*i}, v4, 0")
    for k in range(1, 4):
        for i in range(16):
            a(f"v_dot2_f32_bf16 v{96+i}, v{16+4*i+k}, v{4+k}, v{96+i}")
    a("s_nop 2")
    for sh in ("row_shr:1", "row_shr:2", "row_shr:4", "row_shr:8", "row_bcast:15 row_mask:0xa", "row_bcast:31 row_mask:0xc"):
        for i in range(16):
            a(f"v_add_f32_dpp v{96+i}, v{96+i}, v{96+i} {sh}" + (" row_mask:0xf" if "mask" not in sh else "") + " bank_mask:0xf")
    a("v_mov_b32 v8, 0")
    for i in range(16):
        a(f"v_readlane_b32 s34, v{96+i}, 63\nv_writelane_b32 v8, s34, {i}")
    a(f"v_mul_f32 v8, {hx(f2u(-LOG2E))}, v8\nv_exp_f32 v8, v8\nv_add_f32 v8, 1.0, v8\nv_rcp_f32 v8, v8")
    a(f"s_lshl_b32 s23, s19, 9\ns_lshl_b32 s34, s16, 6\ns_add_u32 s23, s23, s34\ns_add_u32 s23, s23, {hx(OFF_GATE)}")
    a("v_lshlrev_b32 v2, 2, v1\ns_mov_b64 exec, 0xffff")
    a("buffer_store_dword v8, v2, s[12:15], s23 offen sc1")
    a(f"L_end_{name}:\ns_endpgm")
    return a

HDR = """.amdgcn_target "amdgcn-amd-amdhsa--gfx950"
.text
"""
if __name__ == "__main__":
    p1 = gen_p1("p1_kernel")
    src = "; @launch kernel=p1_kernel grid=(256,1,1) block=(512,1,1) lds=163840\n" + HDR + p1.text() + '.section .rodata,"a"\n' + kd("p1_kernel")
    open("k1.s", "w").write(src)
    print("nops added", p1.nops_added)
```

```python
from gen1 import *

def gen_p2(name):
    a = Asm()
    a(f".globl {name}\n.p2align 8\n.type {name},@function\n{name}:")
    a(f"s_cmp_ge_u32 s2, 256\ns_cbranch_scc1 L_end_{name}")
    a("s_load_dwordx4 s[40:43], s[0:1], 40")
    a("s_load_dwordx2 s[44:45], s[0:1], 16")
    a("s_load_dwordx2 s[46:47], s[0:1], 88")
    a("v_and_b32 v1, 63, v0\nv_lshrrev_b32 v2, 6, v0")
    a("v_readfirstlane_b32 s16, v2")
    a("s_and_b32 s17, s16, 3")
    a("s_and_b32 s23, s2, 7\ns_lshr_b32 s29, s2, 3")
    a("s_cmp_ge_u32 s29, 28\ns_cbranch_scc1 L_attn")
    a("s_and_b32 s18, s23, 1")
    a("s_lshr_b32 s19, s23, 1\ns_lshl_b32 s19, s19, 2\ns_and_b32 s30, s29, 3\ns_add_u32 s19, s19, s30")
    a("s_lshr_b32 s20, s29, 2")
    a("s_lshl_b32 s21, s30, 1\ns_add_u32 s21, s21, s20\ns_lshl_b32 s21, s21, 1\ns_and_b32 s21, s21, 15")
    NS = 9
    a("s_cmp_ge_u32 s16, 4\ns_cbranch_scc1 L_sp_help")
    D = 5; AF = 128; ACC = 64; BF = 32; Z1 = 224; AX = 8
    a("v_lshlrev_b32 v2, 4, v1")
    a("s_lshl_b32 s24, s20, 2\ns_add_u32 s24, s24, s17\ns_lshl_b32 s25, s24, 1\ns_add_u32 s24, s25, s18\ns_lshl_b32 s24, s24, 16")
    a("s_waitcnt lgkmcnt(0)")
    srd(a, 12, 46, WS_BYTES)
    srd(a, 8, 42, 4096)
    def aload(sl):
        a(f"s_add_u32 s23, s21, {sl}\ns_and_b32 s23, s23, 15\ns_lshl_b32 s23, s23, 12\ns_add_u32 s23, s23, s24")
        b = AF + 16 * (sl % (D + 1))
        for ks in range(4):
            a(f"buffer_load_dwordx4 {vr(b+4*ks,4)}, v2, s[12:15], s23 offen offset:{ks*1024}")
    a("v_and_b32 v4, 31, v1\nv_lshrrev_b32 v5, 5, v1\nv_lshlrev_b32 v3, 1, v4\ns_lshl_b32 s23, s19, 8")
    for tt in range(4):
        a(f"buffer_load_ushort v{16+tt}, v3, s[8:11], s23 offen offset:{tt*64}")
    for sl in range(D): aload(sl)
    a("v_lshrrev_b32 v6, 1, v4\nv_and_b32 v6, 7, v6\nv_xor_b32 v6, v6, v5\nv_lshlrev_b32 v6, 4, v6")
    a(f"v_lshl_add_u32 v{AX}, v4, 7, v6")
    for k in range(1, 4): a(f"v_xor_b32 v{AX+k}, {32*k}, v{AX}")
    a(f"s_waitcnt vmcnt({4*D})")
    a("s_cmp_eq_u32 s18, 0\ns_cselect_b32 s23, -1, 0")
    for tt in range(4):
        a(f"v_lshlrev_b32 v{16+tt}, 16, v{16+tt}\nv_and_b32 v{16+tt}, s23, v{16+tt}")
    for tt in range(4):
        for r in range(16): a(f"v_mov_b32 v{ACC+16*tt+r}, v{16+tt}")
    a(f"s_mul_i32 s26, s19, {4*56}\ns_add_u32 s26, s26, s25\ns_lshl_b32 s26, s26, 10")
    def breads(g):
        ks = g % 4; b = BF + 16 * (g % 2)
        for tt in range(4):
            a(f"ds_read_b128 {vr(b+4*tt,4)}, v{AX+ks} offset:{tt*4096}")
    a("s_barrier")
    breads(0)
    nvm = [4 * D]
    order = [("A", s) for s in range(D) for _ in range(4)]
    def wait_for(tag):
        last = max(i for i, t in enumerate(order) if t == tag)
        a(f"s_waitcnt vmcnt({len(order) - 1 - last})")
    for g in range(64):
        sl, ks = divmod(g, 4)
        if ks == 3 and g < 63:
            a("s_waitcnt lgkmcnt(0)\ns_barrier")
            d = 16384 if ((sl + 1) % NS) else -16384 * (NS - 1)
            for k in range(4): a(f"v_add_u32 v{AX+k}, {d}, v{AX+k}")
            breads(g + 1)
        elif g < 63:
            breads(g + 1); a("s_waitcnt lgkmcnt(4)")
        else:
            a("s_waitcnt lgkmcnt(0)")
        if ks == 0:
            wait_for(("A", sl))
        af = AF + 16 * (sl % (D + 1)) + 4 * ks; b = BF + 16 * (g % 2)
        for tt in range(4):
            a(f"v_mfma_f32_32x32x16_bf16 {vr(ACC+16*tt,16)}, {vr(af,4)}, {vr(b+4*tt,4)}, {vr(ACC+16*tt,16)}")
            if ks == 0 and tt == 0 and sl + D < 16:
                aload(sl + D); order += [("A", sl + D)] * 4
            if ks == 0 and tt == 0 and sl == 16 - D:
                a(f"s_add_u32 s23, s26, {hx(OFF_Z1)}")
                for t2 in range(4):
                    for u in range(2):
                        a(f"buffer_load_dwordx4 {vr(Z1+8*t2+4*u,4)}, v2, s[12:15], s23 offen offset:{u*1024}")
                    if t2 < 3: a(f"s_add_u32 s23, s23, {56*1024}")
                order += [("Z", 0)] * 8
    a("s_waitcnt vmcnt(0)")
    a(f"s_mul_i32 s23, s18, {hx(OFF_U1-OFF_U0)}\ns_add_u32 s23, s23, s26\ns_add_u32 s23, s23, {hx(OFF_U0)}")
    T = 16
    for tt in range(4):
        for p in range(8):
            z = Z1 + 8*tt + p; t = T + 2 * (p % 4); c = ACC + 16*tt + 2*p
            a(f"v_lshlrev_b32 v{t}, 16, v{z}\nv_and_b32 v{t+1}, 0xffff0000, v{z}")
            a(f"v_pk_mul_f32 {vr(c,2)}, {vr(c,2)}, {vr(t,2)}")
            a(f"v_cvt_pk_bf16_f32 v{z}, v{c}, v{c+1}")
        for u in range(2):
            a(f"buffer_store_dwordx4 {vr(Z1+8*tt+4*u,4)}, v2, s[12:15], s23 offen offset:{u*1024} sc1")
        if tt < 3: a(f"s_add_u32 s23, s23, {56*1024}")
    a("s_endpgm")
    def helper(ns, base, rot, sl_shift_mul, m_step, pre=None):
        def dma(sl):
            if rot: a(f"s_add_u32 s23, s21, {sl}\ns_and_b32 s23, s23, 15\ns_mul_i32 s23, s23, {sl_shift_mul}\ns_add_u32 s23, s23, s24")
            else: a(f"s_add_u32 s23, s24, {sl*sl_shift_mul}")
            for m in range(4):
                a(f"s_add_u32 m0, s27, {base + (sl % ns)*16384 + m*4096}")
                a(f"buffer_load_dwordx4 v2, s[4:7], s23 offen lds")
                if m < 3: a(f"s_add_u32 s23, s23, {m_step}")
        for sl in range(ns): dma(sl)
        if pre: pre()
        issued = ns
        for sl in range(16):
            if not (pre and sl == 0):
                a(f"s_waitcnt vmcnt({4*(issued-1-sl)})")
            a("s_barrier")
            if sl >= 1 and issued < 16:
                dma(issued); issued += 1
    a("L_sp_help:")
    a("v_and_b32 v6, 255, v0")
    a("v_lshrrev_b32 v3, 3, v6\nv_lshlrev_b32 v2, 12, v3")
    a("v_lshrrev_b32 v3, 4, v6\nv_xor_b32 v3, v3, v6\nv_and_b32 v3, 7, v3\nv_lshl_add_u32 v2, v3, 4, v2")
    a("s_lshl_b32 s24, s19, 19\ns_lshl_b32 s23, s18, 11\ns_add_u32 s24, s24, s23\ns_lshl_b32 s27, s17, 10")
    a("s_waitcnt lgkmcnt(0)")
    srd(a, 4, 40, 2048*2048*2)
    helper(NS, 0, True, 128, 32*4096)
    a("s_endpgm")
    a("L_attn:")
    a("s_lshl_b32 s30, s23, 2\ns_sub_u32 s29, s29, 28\ns_add_u32 s30, s30, s29\ns_lshr_b32 s19, s30, 1\ns_and_b32 s18, s30, 1")
    KVL = 8 * 16384
    a("s_cmp_ge_u32 s16, 4\ns_cbranch_scc1 L_at_help")
    ACC = 128; PQ = 96; ND = 64; WOF = 32; OF = 24; KF = 16; AW = 8
    NPQ = 8
    a("v_lshlrev_b32 v2, 4, v1")
    a(f"s_lshl_b32 s24, s19, 2\ns_add_u32 s24, s24, s17\ns_lshl_b32 s25, s24, 15\ns_add_u32 s26, s25, {hx(OFF_PQ)}")
    a("s_waitcnt lgkmcnt(0)")
    srd(a, 12, 46, WS_BYTES)
    a(f"v_and_b32 v4, 31, v1\nv_lshlrev_b32 v3, 2, v4\ns_lshl_b32 s23, s24, 7\ns_add_u32 s23, s23, {hx(OFF_GATE)}")
    a("buffer_load_dword v13, v3, s[12:15], s23 offen")
    def pqload(h):
        if h % 4 == 0 and h: a("s_add_u32 s26, s26, 4096")
        a(f"buffer_load_dwordx4 {vr(PQ+4*(h%NPQ),4)}, v2, s[12:15], s26 offen offset:{(h%4)*1024}")
    for h in range(NPQ): pqload(h)
    a("v_lshrrev_b32 v5, 5, v1\nv_bfe_u32 v6, v1, 2, 2\nv_lshl_add_u32 v14, v5, 3, v6")
    a("v_bfe_u32 v15, v1, 4, 1\nv_lshlrev_b32 v15, 2, v15\nv_and_b32 v7, 1, v1\nv_lshl_add_u32 v15, v7, 1, v15\nv_bfe_u32 v7, v1, 1, 1\nv_add_u32 v15, v15, v7")
    a(f"v_lshlrev_b32 v7, 6, v6\nv_lshl_add_u32 v7, v15, 3, v7\nv_lshl_add_u32 v{AW}, v14, 9, v7")
    for k in range(1, 4): a(f"v_xor_b32 v{AW+k}, {64*k}, v{AW}")
    a(f"v_add_u32 v12, {KVL}, v2")
    a(f"v_mov_b32 v14, {hx(f2u(1e-6))}")
    def woread(h, dt):
        ks = h % 2; w = WOF + 4 * dt
        off = ks * 8192 + (dt >> 2) * 256
        a(f"ds_read_b64_tr_b16 {vr(w,2)}, v{AW+(dt&3)} offset:{off}")
        a(f"ds_read_b64_tr_b16 {vr(w+2,2)}, v{AW+(dt&3)} offset:{off+2048}")
    def kvread(h): a(f"ds_read_b128 {vr(KF+4*(h%2),4)}, v12 offset:{h*1024}")
    def small(h):
        a(f"s_waitcnt vmcnt({min(NPQ-1 if h == 0 else NPQ-2, 31-h)})")
        a(f"v_mfma_f32_32x32x16_bf16 {vr(ND+16*(h%2),16)}, {vr(KF+4*(h%2),4)}, {vr(PQ+4*(h%NPQ),4)}, 0")
    def oval(h):
        n = ND + 16 * (h % 2); o = OF + 4 * (h % 2)
        L = [f"v_add_f32 v{n+8}, v{n+8}, v14", f"v_rcp_f32 v{n+8}, v{n+8}"]
        L += [f"v_mul_f32 v{n+i}, v{n+i}, v{n+8}" for i in range(8)]
        L += [f"v_cvt_pk_bf16_f32 v{o+i}, v{n+2*i}, v{n+2*i+1}" for i in range(4)]
        return L
    a("s_barrier")
    kvread(0); kvread(1)
    for dt in range(8): woread(0, dt)
    a("s_waitcnt lgkmcnt(15)")
    small(0)
    for x in oval(0): a(x)
    for h in range(32):
        a("s_waitcnt lgkmcnt(0)")
        if h < 31:
            small(h + 1)
            if h + NPQ < 32: pqload(h + NPQ)
        if h % 2 == 1 and h < 31:
            a("s_barrier")
            sl = (h + 1) // 2
            d = 16384 if (sl % 8) else -16384 * 7
            for k in range(4): a(f"v_add_u32 v{AW+k}, {d}, v{AW+k}")
        ov = oval(h + 1) if h < 31 else []
        for dt in range(8):
            c = "0" if h == 0 else vr(ACC+16*dt, 16)
            a(f"v_mfma_f32_32x32x16_bf16 {vr(ACC+16*dt,16)}, {vr(WOF+4*dt,4)}, {vr(OF+4*(h%2),4)}, {c}")
            if h < 31: woread(h + 1, dt)
            if dt == 0 and h < 30: kvread(h + 2)
            if dt >= 3:
                k = 3
                for x in ov[(dt-3)*k:(dt-2)*k]: a(x)
    a(f"s_lshl_b32 s23, s18, 14\ns_add_u32 s23, s23, s25\ns_add_u32 s23, s23, {hx(OFF_GA)}")
    a("v_mov_b32 v12, v13")
    for dt in range(8):
        c = ACC + 16 * dt
        for p in range(8): a(f"v_pk_mul_f32 {vr(c+2*p,2)}, {vr(c+2*p,2)}, v[12:13]")
        pack(a, c, c, 16)
        for u in range(2):
            a(f"buffer_store_dwordx4 {vr(c+4*u,4)}, v2, s[12:15], s23 offen offset:{(dt%2)*2048+u*1024} sc1")
        if dt % 2 == 1 and dt < 7: a("s_add_u32 s23, s23, 4096")
    a("s_endpgm")
    a("L_at_help:")
    a("v_and_b32 v6, 255, v0\nv_lshrrev_b32 v3, 5, v6\nv_and_b32 v4, 3, v3\nv_lshlrev_b32 v4, 2, v4\nv_and_b32 v5, 31, v6\nv_xor_b32 v4, v4, v5\nv_lshlrev_b32 v4, 4, v4\nv_lshl_add_u32 v2, v3, 10, v4")
    a("s_lshl_b32 s24, s18, 9\ns_lshl_b32 s27, s17, 10")
    a("s_waitcnt lgkmcnt(0)")
    srd(a, 4, 44, 512*512*2)
    srd(a, 12, 46, WS_BYTES)
    def kvconv():
        a("v_and_b32 v4, 31, v1\nv_min_u32 v4, 16, v4\nv_lshrrev_b32 v5, 5, v1\nv_lshlrev_b32 v5, 5, v5\nv_lshl_add_u32 v4, v4, 6, v5")
        a(f"s_mul_i32 s23, s17, {8*1088}\ns_add_u32 s23, s23, {hx(OFF_KV)}")
        for h in range(8):
            if h % 2 == 0 and h: a(f"s_add_u32 s23, s23, {2*1088}")
            a(f"buffer_load_dwordx4 {vr(16+8*h,4)}, v4, s[12:15], s23 offen offset:{(h%2)*1088}")
            a(f"buffer_load_dwordx4 {vr(20+8*h,4)}, v4, s[12:15], s23 offen offset:{(h%2)*1088+16}")
        a(f"s_lshl_b32 s23, s17, 13\ns_add_u32 s23, s23, {KVL}\nv_lshlrev_b32 v5, 4, v1\nv_add_u32 v5, s23, v5")
        a("s_waitcnt vmcnt(0)")
        for h in range(8):
            pack(a, 16+8*h, 16+8*h, 8)
            a(f"ds_write_b128 v5, {vr(16+8*h,4)} offset:{h*1024}")
        a("s_waitcnt lgkmcnt(0)")
    helper(8, 0, False, 32*1024, 8*1024, pre=kvconv)
    a(f"L_end_{name}:\ns_endpgm")
    return a

def gen_p3(name):
    a = Asm()
    a(f".globl {name}\n.p2align 8\n.type {name},@function\n{name}:")
    a(f"s_cmp_ge_u32 s2, 256\ns_cbranch_scc1 L_end_{name}")
    a("s_load_dwordx2 s[40:41], s[0:1], 56")
    a("s_load_dwordx2 s[42:43], s[0:1], 72")
    a("s_load_dwordx2 s[46:47], s[0:1], 88")
    a("v_and_b32 v1, 63, v0\nv_lshrrev_b32 v2, 6, v0")
    a("v_readfirstlane_b32 s16, v2")
    a("s_and_b32 s17, s16, 3\ns_lshr_b32 s18, s16, 2")
    a("s_and_b32 s23, s2, 7\ns_lshr_b32 s29, s2, 3\ns_and_b32 s20, s29, 7\ns_lshr_b32 s19, s29, 3\ns_lshl_b32 s23, s23, 2\ns_add_u32 s19, s19, s23")
    a("s_lshl_b32 s21, s19, 1\ns_add_u32 s21, s21, s18")
    a("v_lshrrev_b32 v3, 3, v1\nv_bfe_u32 v4, v1, 4, 1\nv_lshlrev_b32 v4, 2, v4\nv_and_b32 v5, 7, v1\nv_xor_b32 v4, v4, v5\nv_lshlrev_b32 v4, 4, v4\nv_lshl_add_u32 v3, v3, 10, v4")
    a("s_mul_i32 s24, s17, 28\ns_mul_i32 s23, s18, 14\ns_add_u32 s24, s24, s23\ns_lshl_b32 s27, s24, 10\ns_lshl_b32 s24, s24, 13\ns_lshl_b32 s23, s20, 7\ns_add_u32 s24, s24, s23")
    a("v_lshlrev_b32 v2, 4, v1")
    a(f"s_mul_i32 s25, s21, 56\ns_mul_i32 s23, s17, 14\ns_add_u32 s25, s25, s23\ns_lshl_b32 s25, s25, 10\ns_add_u32 s25, s25, {hx(OFF_U0)}\ns_add_u32 s26, s25, {hx(OFF_U1-OFF_U0)}")
    a("s_waitcnt lgkmcnt(0)")
    srd(a, 4, 40, 896*512*2)
    srd(a, 8, 42, 2048*512*2)
    srd(a, 12, 46, WS_BYTES)
    for m in range(14):
        a(f"s_add_u32 m0, s27, {m*1024}")
        a("buffer_load_dwordx4 v3, s[4:7], s24 offen lds")
        if m < 13: a("s_add_u32 s24, s24, 8192")
    U = 128; ACC = 64; WF = 32; AW = 8
    for ks in range(14):
        if ks % 4 == 0 and ks: a("s_add_u32 s25, s25, 4096\ns_add_u32 s26, s26, 4096")
        a(f"buffer_load_dwordx4 {vr(U+8*ks,4)}, v2, s[12:15], s25 offen offset:{(ks%4)*1024}")
        a(f"buffer_load_dwordx4 {vr(U+8*ks+4,4)}, v2, s[12:15], s26 offen offset:{(ks%4)*1024}")
    a("v_lshrrev_b32 v4, 3, v1\nv_and_b32 v5, 7, v1\ns_lshl_b32 s23, s17, 3\nv_add_u32 v4, s23, v4")
    a("v_lshrrev_b32 v6, 1, v5\nv_lshlrev_b32 v6, 10, v6\nv_and_b32 v7, 1, v5\nv_lshl_add_u32 v6, v7, 9, v6\nv_lshl_add_u32 v6, v4, 4, v6")
    a(f"s_lshl_b32 s23, s21, 5\ns_lshl_b32 s30, s20, 2\ns_add_u32 s23, s23, s30\ns_lshl_b32 s23, s23, 10\ns_add_u32 s23, s23, {hx(OFF_GA)}")
    a("buffer_load_dwordx4 v[20:23], v6, s[12:15], s23 offen")
    a(f"v_lshlrev_b32 v6, 2, v4\ns_lshl_b32 s23, s21, 7\ns_add_u32 s23, s23, {hx(OFF_GATE)}")
    a("buffer_load_dword v24, v6, s[12:15], s23 offen")
    a("v_lshrrev_b32 v12, 5, v1\nv_bfe_u32 v13, v1, 2, 2\nv_lshl_add_u32 v14, v12, 3, v13")
    a("v_bfe_u32 v15, v1, 4, 1\nv_lshlrev_b32 v15, 2, v15\nv_and_b32 v7, 1, v1\nv_lshl_add_u32 v15, v7, 1, v15\nv_bfe_u32 v7, v1, 1, 1\nv_add_u32 v15, v15, v7")
    a(f"v_bfe_u32 v7, v1, 3, 1\nv_lshlrev_b32 v7, 6, v7\nv_lshl_add_u32 v7, v15, 3, v7\nv_lshl_add_u32 v{AW}, v14, 7, v7")
    a(f"s_mul_i32 s23, s17, 28672\nv_add_u32 v{AW}, s23, v{AW}\nv_xor_b32 v{AW+1}, 64, v{AW}")
    def wread(ks):
        w = WF + 8 * (ks % 2)
        for dt in range(2):
            a(f"ds_read_b64_tr_b16 {vr(w+4*dt,2)}, v{AW+dt} offset:{ks*2048}")
            a(f"ds_read_b64_tr_b16 {vr(w+4*dt+2,2)}, v{AW+dt} offset:{ks*2048+512}")
    a("s_waitcnt vmcnt(30)\ns_barrier")
    wread(0)
    for ks in range(14):
        if ks < 13:
            wread(ks + 1); a(f"s_waitcnt vmcnt({2*(13-ks)+2}) lgkmcnt(4)")
        else:
            a("s_waitcnt vmcnt(2) lgkmcnt(0)")
        w = WF + 8 * (ks % 2)
        for uu in range(2):
            for dt in range(2):
                c = "0" if (ks == 0 and uu == 0) else vr(ACC+16*dt, 16)
                a(f"v_mfma_f32_32x32x16_bf16 {vr(ACC+16*dt,16)}, {vr(w+4*dt,4)}, {vr(U+8*ks+4*uu,4)}, {c}")
    a("v_and_b32 v12, 31, v1\nv_lshrrev_b32 v13, 5, v1\nv_lshlrev_b32 v13, 1, v13\nv_and_b32 v14, 7, v1\nv_xor_b32 v13, v13, v14\nv_lshlrev_b32 v13, 4, v13\nv_lshl_add_u32 v12, v12, 8, v13")
    a("s_lshl_b32 s23, s18, 2\ns_add_u32 s23, s23, s17\ns_lshl_b32 s23, s23, 13\nv_add_u32 v12, s23, v12")
    a("v_xor_b32 v13, 16, v12\nv_xor_b32 v14, 64, v12\nv_xor_b32 v15, 0x50, v12")
    a("s_barrier")
    for dt in range(2):
        for u in range(2):
            for q in range(2):
                a(f"ds_write_b128 v{12+2*u+q}, {vr(ACC+16*dt+8*u+4*q,4)} offset:{dt*128}")
    a("v_lshlrev_b32 v13, 1, v5\nv_and_b32 v14, 7, v4\nv_xor_b32 v13, v13, v14\nv_lshlrev_b32 v13, 4, v13\nv_lshl_add_u32 v12, v4, 8, v13")
    a("s_lshl_b32 s23, s18, 15\nv_add_u32 v12, s23, v12\nv_xor_b32 v13, 16, v12")
    a("s_waitcnt lgkmcnt(0)\ns_barrier")
    for k in range(4):
        a(f"ds_read_b128 {vr(32+8*k,4)}, v12 offset:{k*8192}\nds_read_b128 {vr(36+8*k,4)}, v13 offset:{k*8192}")
    a("s_waitcnt vmcnt(0)")
    a("v_sub_f32 v24, 1.0, v24\nv_mov_b32 v25, v24")
    for p in range(4):
        a(f"v_lshlrev_b32 v{64+2*p}, 16, v{20+p}\nv_and_b32 v{65+2*p}, 0xffff0000, v{20+p}")
    a("s_lshl_b32 s23, s21, 15\ns_lshl_b32 s30, s20, 7\ns_add_u32 s23, s23, s30")
    a("v_lshlrev_b32 v6, 10, v4\nv_lshl_add_u32 v6, v5, 4, v6")
    a("s_waitcnt lgkmcnt(0)")
    for p in range(4):
        b = 32 + 2*p
        a(f"v_pk_add_f32 {vr(b,2)}, {vr(b,2)}, {vr(b+8,2)}\nv_pk_add_f32 {vr(b+16,2)}, {vr(b+16,2)}, {vr(b+24,2)}")
    for p in range(4):
        b = 32 + 2*p
        a(f"v_pk_add_f32 {vr(b,2)}, {vr(b,2)}, {vr(b+16,2)}")
    for p in range(4):
        b = 32 + 2*p
        a(f"v_pk_fma_f32 {vr(b,2)}, {vr(b,2)}, v[24:25], {vr(64+2*p,2)}")
    pack(a, 32, 32, 8)
    a("buffer_store_dwordx4 v[32:35], v6, s[8:11], s23 offen sc1")
    a(f"s_cmp_lg_u32 s2, 0\ns_cbranch_scc1 L_end_{name}\ns_cmp_lg_u32 s16, 0\ns_cbranch_scc1 L_end_{name}")
    a(f"v_mov_b32 v4, 1\nv_mov_b32 v5, {hx(OFF_EPOCH)}\ns_mov_b64 exec, 1\nbuffer_atomic_add v4, v5, s[12:15], 0 offen")
    a(f"L_end_{name}:\ns_endpgm")
    return a

if __name__ == "__main__":
    ks = [("p1_kernel", gen_p1), ("p2_kernel", gen_p2), ("p3_kernel", gen_p3)]
    src = "".join(f"; @launch kernel={n} grid=(256,1,1) block=(512,1,1) lds=163840\n" for n, _ in ks) + HDR
    for n, g in ks: src += g(n).text()
    src += '.section .rodata,"a"\n' + "".join(kd(n) for n, _ in ks)
    open("k123.s", "w").write(src)
```

```python
import re

TRANS = ("v_exp_f32", "v_log_f32", "v_rcp_f32", "v_rsq_f32", "v_sqrt_f32", "v_sin_f32", "v_cos_f32")
REG_RE = re.compile(r"\b([vsa])(\d+)\b|\b([vsa])\[(\d+):(\d+)\]|\b(vcc|exec|m0|scc)\b")

def regs_of(tok):
    out = []
    for m in REG_RE.finditer(tok):
        if m.group(1): out.append((m.group(1), int(m.group(2))))
        elif m.group(3): out += [(m.group(3), i) for i in range(int(m.group(4)), int(m.group(5)) + 1)]
        else: out.append((m.group(6), 0))
    return out

def split_ops(s):
    ops, cur, d = [], "", 0
    for ch in s:
        if ch == "[": d += 1
        if ch == "]": d -= 1
        if ch == "," and d == 0: ops.append(cur.strip()); cur = ""
        else: cur += ch
    if cur.strip(): ops.append(cur.strip())
    return ops

class Ins:
    def __init__(self, text):
        self.text = text
        t = text.split(";")[0].strip()
        self.is_label = t.endswith(":") or t.startswith(".") or t == ""
        self.op = t.split()[0] if t else ""
        rest = t[len(self.op):].strip()
        self.ops = split_ops(rest)
        op = self.op
        self.kind = "other"
        self.w = []; self.r = []
        if self.is_label: self.kind = "label"; return
        if op.startswith("v_mfma"):
            self.kind = "mfma"
            self.passes = 8 if "32x32" in op else 4
            self.w = regs_of(self.ops[0]); self.a = regs_of(self.ops[1]); self.b = regs_of(self.ops[2]); self.c = regs_of(self.ops[3].split()[0])
            self.r = self.a + self.b + self.c
        elif op.startswith("v_"):
            self.kind = "valu"
            self.trans = any(op.startswith(x) for x in TRANS)
            self.dpp = ("row_" in t or "quad_perm" in t or "wave_" in t or "_dpp" in op)
            if op.startswith("v_cmp"):
                self.w = regs_of(self.ops[0]); self.r = sum((regs_of(o) for o in self.ops[1:]), [])
                if op.startswith("v_cmpx"): self.w += [("exec", 0)]
            elif op.startswith("v_permlane") and "swap" in op:
                self.w = regs_of(self.ops[0]) + regs_of(self.ops[1]); self.r = list(self.w)
            elif any(op.startswith(x) for x in ("v_add_co", "v_sub_co", "v_addc_co", "v_subb_co", "v_div_scale", "v_mad_u64")):
                self.w = regs_of(self.ops[0]) + regs_of(self.ops[1]); self.r = sum((regs_of(o) for o in self.ops[2:]), [])
            else:
                self.w = regs_of(self.ops[0]); self.r = sum((regs_of(o) for o in self.ops[1:]), [])
                if op.startswith("v_fmac") or op.startswith("v_pk_fmac") or op.startswith("v_writelane") or self.dpp or op.startswith("v_dot2c"):
                    self.r += self.w
        elif op.startswith("ds_"):
            self.kind = "ds"
            if op.startswith("ds_read") or "permute" in op or "swizzle" in op or "_rtn" in op:
                self.w = regs_of(self.ops[0]); self.r = sum((regs_of(o) for o in self.ops[1:]), [])
            else:
                self.r = sum((regs_of(o) for o in self.ops), [])
        elif op.startswith("buffer_") or op.startswith("global_"):
            self.kind = "vmem"
            self.lds = bool(re.search(r"\blds\b", t)) or "load_lds" in op
            allr = sum((regs_of(o) for o in self.ops), [])
            self.wide_data = []
            if op in ("buffer_inv", "buffer_wbl2"):
                pass
            elif "load" in op and not self.lds:
                self.w = regs_of(self.ops[0]); self.r = sum((regs_of(o) for o in self.ops[1:]), [])
            else:
                self.r = allr
                if "store" in op and ("x4" in op or "x3" in op):
                    self.wide_data = regs_of(self.ops[0] if op.startswith("buffer_") else self.ops[1])
                if "atomic" in op and re.search(r"\bsc0\b", t):
                    self.w = regs_of(self.ops[0])
            if self.lds: self.r += [("m0", 0)]
        elif op.startswith("s_"):
            self.kind = "salu"
            if op == "s_nop": self.kind = "nop"; self.n = int(self.ops[0], 0) + 1
            elif op.startswith(("s_cmp", "s_cbranch", "s_branch", "s_waitcnt", "s_barrier", "s_endpgm", "s_setprio", "s_sleep", "s_bitcmp", "s_setpc")):
                self.r = sum((regs_of(o) for o in self.ops), [])
            else:
                self.w = regs_of(self.ops[0]); self.r = sum((regs_of(o) for o in self.ops[1:]), [])
                if "saveexec" in op: self.w += [("exec", 0)]

def need(p, c):
    n = 0
    pw = set(p.w); cr = set(c.r); cw = set(c.w)
    if p.kind == "valu":
        vw = {x for x in pw if x[0] in "va"}
        sw = {x for x in pw if x[0] in ("s", "vcc")}
        if c.kind == "mfma" and vw & cr: n = max(n, 2)
        if c.kind == "valu":
            if p.trans and not c.trans and vw & cr: n = max(n, 1)
            if p.trans and c.trans and vw & cr: n = max(n, 1)
            if c.op.startswith(("v_readfirstlane", "v_readlane")) and vw & cr: n = max(n, 1)
            if (c.dpp or c.op.startswith("v_permlane")) and vw & cr: n = max(n, 2)
            if sw & cr:
                n = max(n, 4 if c.op.startswith(("v_readlane", "v_writelane", "v_div_fmas")) else 2)
            if ("exec", 0) in pw:
                if c.dpp: n = max(n, 5)
                if c.op.startswith(("v_readfirstlane", "v_readlane", "v_writelane", "v_permlane")): n = max(n, 4)
            if "op_sel" in p.text and not p.op.startswith("v_pk") and vw & (cr | cw): n = max(n, 1)
            if "sdwa" in p.text and vw & (cr | cw): n = max(n, 1)
        if c.kind == "vmem" and sw & cr: n = max(n, 5)
        if c.kind == "mfma" and ("exec", 0) in pw: n = max(n, 4)
        if c.kind == "salu" and c.op.startswith("s_cbranch_vcc") and ("vcc", 0) in pw: n = max(n, 1)
    elif p.kind == "mfma":
        big = {4: 8, 8: 12}[p.passes]
        if c.kind == "mfma":
            if pw & (set(c.a) | set(c.b)): n = max(n, big)
            if pw & set(c.c):
                if not (p.w == c.c and p.passes == c.passes): n = max(n, {4: 6, 8: 10}[p.passes])
            elif pw & cw: n = max(n, big)
        elif c.kind in ("valu", "ds", "vmem"):
            if pw & (cr | cw): n = max(n, big)
            if c.kind == "valu" and set(p.c) & cw: n = max(n, {4: 3, 8: 7}[p.passes])
    elif p.kind == "salu":
        if ("m0", 0) in pw and c.kind in ("vmem", "ds") and ("m0", 0) in cr: n = max(n, 1)
    elif p.kind == "vmem":
        if p.wide_data and set(p.wide_data) & cw: n = max(n, 2 if c.kind == "valu" else 1)
    return n

class Asm:
    def __init__(self):
        self.lines = []
        self.nops_added = 0
    def e(self, text):
        for ln in text.split("\n"):
            ln = ln.strip()
            if ln: self._add(Ins(ln))
    __call__ = e
    def _add(self, ins):
        if ins.kind != "label":
            dist = 0; req = 0
            for p in reversed(self.lines):
                if p.kind == "label": continue
                if dist >= 20: break
                r = need(p, ins) - dist
                if r > req: req = r
                dist += p.n if p.kind == "nop" else 1
            while req > 0:
                k = min(req, 16)
                self.lines.append(Ins(f"s_nop {k-1}")); self.nops_added += 1
                req -= k
        self.lines.append(ins)
    STAMPS = False
    STAMP_OP = 's_memrealtime'
    OFF_STAMP = 0x1700000
    def stamp(self, k):
        if Asm.STAMPS:
            self.e(f"{Asm.STAMP_OP} s[{64+2*k}:{65+2*k}]\ns_waitcnt lgkmcnt(0)")
    def stamp_init(self):
        if Asm.STAMPS:
            for k in range(1, 16): self.e(f"s_mov_b32 s{64+2*k}, 0")
            self.stamp(0)
    def stamp_flush(self, kidx, srd=12, wave="s16", wait=True):
        if Asm.STAMPS:
            if wait: self.e("s_waitcnt vmcnt(0)")
            self.stamp(15)
            self.e("s_mov_b64 exec, 0xffff\nv_mov_b32 v30, 0")
            for k in range(16): self.e(f"v_writelane_b32 v30, s{64+2*k}, {k}")
            self.e(f"s_lshl_b32 s60, s2, 3\ns_add_u32 s60, s60, {wave}\ns_lshl_b32 s60, s60, 6\ns_add_u32 s60, s60, {hex(Asm.OFF_STAMP + kidx*256*8*64)}")
            self.e("v_mbcnt_lo_u32_b32 v31, -1, 0\nv_lshlrev_b32 v31, 2, v31")
            self.e(f"buffer_store_dword v30, v31, s[{srd}:{srd+3}], s60 offen")
    def label(self, name): self.e(name + ":")
    def text(self):
        return "\n".join((l.text if l.kind == "label" else "    " + l.text) for l in self.lines) + "\n"

def kd(name, vgpr=256, sgpr=100, acc=None):
    return f""".p2align 6
.amdhsa_kernel {name}
  .amdhsa_next_free_vgpr {vgpr}
  .amdhsa_next_free_sgpr {sgpr}
  .amdhsa_accum_offset {acc or min(256, (vgpr + 3) // 4 * 4)}
  .amdhsa_group_segment_fixed_size 0
  .amdhsa_kernarg_size 96
  .amdhsa_user_sgpr_count 2
  .amdhsa_user_sgpr_kernarg_segment_ptr 1
  .amdhsa_system_sgpr_workgroup_id_x 1
.end_amdhsa_kernel
"""
```

```python
import struct, math, sys
from asmlib import Asm, kd

def f2u(x): return struct.unpack("<I", struct.pack("<f", x))[0]
def hx(x): return "0x%x" % (x & 0xffffffff)

OFF_Z2N = 0x0
OFF_Z1 = 0x400000
OFF_PQ = 0x800000
OFF_U0 = 0xA00000
OFF_U1 = 0xE00000
OFF_GA = 0x1200000
OFF_KV = 0x1600000
OFF_GATE = 0x1610000
OFF_EX = 0x1620000
OFF_FLAG = 0x1680000
F_P1 = OFF_FLAG
F_Z1 = OFF_FLAG + 0x8000
F_ZERO = OFF_FLAG + 0xC000
F_P2 = OFF_FLAG + 0x10000
OFF_EPOCH = 0x16F0000
WS_BYTES = 0x1800000
TAGINC = 0x9E3779B9
SPIN_MAX = 0x40000

GK = 2.0 * math.sqrt(2.0 / math.pi) * math.log2(math.e)
LOG2E = math.log2(math.e)
P_X, P_WQKV, P_WO, P_WIN, P_WSP, P_BSP, P_WOUT, P_GW, P_OUT, P_WS = 36, 38, 40, 44, 46, 48, 50, 52, 54, 58

def vr(b, n): return f"v[{b}:{b+n-1}]"
def srd(a, d, lo, nbytes):
    a(f"s_mov_b32 s{d}, s{lo}\ns_mov_b32 s{d+1}, s{lo+1}\ns_mov_b32 s{d+2}, {hx(nbytes)}\ns_mov_b32 s{d+3}, 0x20000")

def gelu_ops(regs, tmp, c1, c0, G=4):
    L = []
    for i in range(0, len(regs), G):
        grp = regs[i:i+G]
        T = [tmp + 2*k for k in range(len(grp))]
        for x, t in zip(grp, T): L.append(f"v_pk_mul_f32 {vr(t,2)}, {vr(x,2)}, {vr(x,2)}")
        for x, t in zip(grp, T): L.append(f"v_pk_fma_f32 {vr(t,2)}, {vr(t,2)}, {vr(c1,2)}, {vr(c0,2)}")
        for x, t in zip(grp, T): L.append(f"v_pk_mul_f32 {vr(t,2)}, {vr(t,2)}, {vr(x,2)}")
        for x, t in zip(grp, T): L.append(f"v_exp_f32 v{t}, v{t}\nv_exp_f32 v{t+1}, v{t+1}")
        for x, t in zip(grp, T): L.append(f"v_pk_add_f32 {vr(t,2)}, {vr(t,2)}, 1.0 op_sel_hi:[1,0]")
        for x, t in zip(grp, T): L.append(f"v_rcp_f32 v{t}, v{t}\nv_rcp_f32 v{t+1}, v{t+1}")
        for x, t in zip(grp, T): L.append(f"v_pk_mul_f32 {vr(x,2)}, {vr(x,2)}, {vr(t,2)}")
    return L

def phi_ops(regs, tmp, cl2e, ceps, G=4):
    L = []
    for i in range(0, len(regs), G):
        grp = regs[i:i+G]
        T = [tmp + 2*k for k in range(len(grp))]
        for x, t in zip(grp, T): L.append(f"v_pk_mul_f32 {vr(t,2)}, {vr(x,2)}, {vr(cl2e,2)}")
        for x, t in zip(grp, T): L.append(f"v_exp_f32 v{t}, v{t} clamp\nv_exp_f32 v{t+1}, v{t+1} clamp")
        for x, t in zip(grp, T): L.append(f"v_max_f32 v{x}, 0, v{x}\nv_max_f32 v{x+1}, 0, v{x+1}")
        for x, t in zip(grp, T): L.append(f"v_pk_add_f32 {vr(x,2)}, {vr(x,2)}, {vr(t,2)}")
        for x, t in zip(grp, T): L.append(f"v_pk_add_f32 {vr(x,2)}, {vr(x,2)}, {vr(ceps,2)}")
    return L

def pack_ops(dst, src, n): return [f"v_cvt_pk_bf16_f32 v{dst+i}, v{src+2*i}, v{src+2*i+1}" for i in range(n // 2)]

def weave(a, main, side):
    n, m = len(main), len(side); j = 0
    for i, x in enumerate(main):
        while j < m and j * n <= i * m:
            a(side[j]); j += 1
        a(x)
    while j < m: a(side[j]); j += 1

UNIT = 16384
PIECE_UNIT = [6, 7, 8, 9, 0, 1, 2]
AT_RING = [6, 7, 8, 9, 0, 1, 2, 3]

def gen(name, cfg):
    a = Asm()
    lbl = [0]
    def set_flag(base_expr_sreg):
        a(f"v_mov_b32 v4, s28\nv_mov_b32 v5, 0\ns_mov_b64 exec, 1")
        a(f"buffer_store_dword v4, v5, s[12:15], s{base_expr_sreg} offen sc1\ns_mov_b64 exec, -1")
    def poll(vaddr, sreg, vdst, offsets=(0,)):
        lbl[0] += 1; L = f"L_poll{lbl[0]}"
        a(f"{L}:")
        for k, off in enumerate(offsets):
            if off: a(f"s_add_u32 s35, s{sreg}, {off}")
            a(f"buffer_load_dword v{vdst+k}, v{vaddr}, s[12:15], s{35 if off else sreg} offen sc1")
        a("s_add_u32 s33, s33, 1")
        a("s_waitcnt vmcnt(0)")
        a(f"v_cmp_ne_u32 vcc, s28, v{vdst}")
        for k in range(1, len(offsets)):
            a(f"v_cmp_ne_u32 s[60:61], s28, v{vdst+k}\ns_nop 1\ns_or_b64 vcc, vcc, s[60:61]")
        a(f"s_cmp_gt_u32 s33, {SPIN_MAX}\ns_cbranch_scc1 {L}_d")
        a(f"s_cbranch_vccnz {L}")
        a(f"{L}_d:")

    a(f".globl {name}\n.p2align 8\n.type {name},@function\n{name}:")
    a(f"s_cmp_ge_u32 s2, 256\ns_cbranch_scc1 L_end")
    a("s_load_dwordx16 s[36:51], s[0:1], 0")
    a("s_load_dwordx8 s[52:59], s[0:1], 64")
    a.stamp_init()
    a("v_and_b32 v1, 63, v0\nv_lshrrev_b32 v2, 6, v0")
    a("v_readfirstlane_b32 s16, v2")
    a("s_lshr_b32 s29, s2, 3\ns_and_b32 s30, s2, 1")
    a("s_bfe_u32 s19, s2, 0x20001\ns_lshl_b32 s19, s19, 2\ns_and_b32 s23, s29, 3\ns_add_u32 s19, s19, s23")
    a("s_lshr_b32 s31, s29, 2")
    a("s_lshl_b32 s21, s23, 1\ns_add_u32 s21, s21, s31\ns_and_b32 s21, s21, 7")
    a("s_and_b32 s20, s31, 3\ns_lshl_b32 s23, s30, 2\ns_add_u32 s20, s20, s23")
    a("s_and_b32 s17, s16, 3\ns_lshr_b32 s18, s16, 2\ns_lshl_b32 s27, s16, 10\ns_mov_b32 s33, 0")
    if cfg.get("codepf", 1):
        a("s_cmp_lg_u32 s16, 7\ns_cbranch_scc1 L_nopf")
        a("s_getpc_b64 s[60:61]\nL_pc0:")
        a(f"s_sub_u32 s60, s60, L_pc0-{name}\ns_subb_u32 s61, s61, 0")
        a("v_and_b32 v3, 15, v0\nv_lshlrev_b32 v3, 12, v3\ns_lshl_b32 s23, s29, 7\nv_add_u32 v3, s23, v3")
        a(f"v_cmp_gt_u32 vcc, L_codeend-{name}, v3\ns_and_b64 exec, vcc, 0xffff")
        a("global_load_dword v255, v3, s[60:61]")
        a("s_mov_b64 exec, -1")
        a("L_nopf:")
    VX, VW, VWQ = 2, 3, 7
    a("v_lshrrev_b32 v3, 3, v0\nv_lshlrev_b32 v2, 10, v3")
    a("v_lshrrev_b32 v3, 4, v0\nv_xor_b32 v3, v3, v0\nv_and_b32 v3, 7, v3\nv_lshl_add_u32 v2, v3, 4, v2")
    a("v_lshrrev_b32 v4, 4, v1\nv_lshlrev_b32 v5, 2, v4\nv_and_b32 v6, 15, v1\nv_xor_b32 v5, v5, v6")
    a("v_lshrrev_b32 v4, 4, v0")
    a("s_lshl_b32 s24, s19, 17")
    a("s_cmp_ge_u32 s31, 4\ns_cbranch_scc1 L_qkv_cols")
    a("s_movk_i32 s22, 3584\ns_movk_i32 s23, 128")
    a("s_lshl_b32 s26, s20, 8\ns_add_u32 s25, s26, 1792\ns_branch L_cols_done")
    a("L_qkv_cols:")
    a("s_movk_i32 s22, 3072\ns_movk_i32 s23, 1024")
    a("s_lshl_b32 s26, s20, 7\ns_add_u32 s25, s26, 1024")
    a("L_cols_done:")
    a("v_mul_lo_u32 v3, v4, s22\nv_and_b32 v6, 7, v5\nv_lshl_add_u32 v3, v6, 4, v3")
    a("v_lshrrev_b32 v6, 3, v5\nv_mul_lo_u32 v6, v6, s23\nv_add_u32 v3, v3, v6")
    a("s_lshl_b32 s32, s22, 5")
    a("s_waitcnt lgkmcnt(0)")
    srd(a, 4, P_X, 2048*512*2)
    srd(a, 12, P_WS, WS_BYTES)
    a(f"s_add_u32 s60, s{P_WS}, {hx(OFF_EPOCH)}\ns_addc_u32 s61, s{P_WS+1}, 0\ns_load_dword s28, s[60:61], 0")
    a("s_cmp_eq_u32 s26, 1792\ns_cbranch_scc1 L_misc")
    a("s_cmp_eq_u32 s22, 3072")
    a(f"s_cselect_b32 s8, s{P_WQKV}, s{P_WIN}\ns_cselect_b32 s9, s{P_WQKV+1}, s{P_WIN+1}")
    a(f"s_lshl_b32 s10, s22, 9\ns_mov_b32 s11, 0x20000")
    def dx(it, unit, half):
        return (f"s_add_u32 s23, s21, {it}\ns_and_b32 s23, s23, 7\ns_lshl_b32 s34, s23, 7\ns_add_u32 s34, s34, s24\n" +
                (f"s_add_u32 s34, s34, 65536\n" if half else "") +
                f"s_add_u32 m0, s27, {unit*UNIT + half*8192}\nbuffer_load_dwordx4 v{VX}, s[4:7], s34 offen lds")
    def dw(it, unit, half, col, v=VW):
        return (f"s_add_u32 s23, s21, {it}\ns_and_b32 s23, s23, 7\ns_lshl_b32 s23, s23, 1\n" + (f"s_or_b32 s23, s23, 1\n" if half else "") +
                f"s_mul_i32 s34, s23, s32\ns_add_u32 s34, s34, s{col}\n"
                f"s_add_u32 m0, s27, {unit*UNIT + half*8192}\nbuffer_load_dwordx4 v{v}, s[8:11], s34 offen lds")
    def grp(it):
        s = it % 3
        return [dx(it, 2*s, 0), dw(it, 2*s+1, 0, 25), dx(it, 2*s, 1), dw(it, 2*s+1, 1, 25)]
    WB_UNIT = [6, 7, 8, 9, 4, 5, 0, 1]
    SCR = 2 * UNIT
    for it in range(2):
        for x in grp(it): a(x)
    a.stamp(1)
    AX = 8; AWA, AWB = 12, 13; ATR = 17
    a("v_and_b32 v4, 31, v1\nv_lshrrev_b32 v5, 5, v1")
    a("v_lshrrev_b32 v6, 1, v4\nv_and_b32 v6, 7, v6\nv_xor_b32 v6, v6, v5\nv_lshlrev_b32 v6, 4, v6")
    a(f"v_lshl_add_u32 v14, v4, 7, v6")
    a(f"s_lshl_b32 s23, s17, 12\nv_add_u32 v{AX}, s23, v14")
    for k in range(1, 4): a(f"v_xor_b32 v{AX+k}, {32*k}, v{AX}")
    a("v_bfe_u32 v6, v1, 2, 2\nv_lshl_add_u32 v18, v5, 3, v6")
    a("v_bfe_u32 v15, v1, 4, 1\nv_lshlrev_b32 v15, 2, v15\nv_and_b32 v16, 1, v1\nv_lshl_add_u32 v15, v16, 1, v15\nv_bfe_u32 v16, v1, 1, 1\nv_add_u32 v15, v15, v16")
    a("v_xor_b32 v16, s18, v6\nv_lshlrev_b32 v16, 6, v16\nv_lshl_add_u32 v16, v15, 3, v16")
    a(f"v_lshl_add_u32 v{AWA}, v18, 8, v16\nv_add_u32 v{AWA}, {UNIT}, v{AWA}\nv_xor_b32 v{AWB}, 0x80, v{AWA}")
    a(f"v_lshlrev_b32 v{ATR}, 7, v18\nv_lshl_add_u32 v{ATR}, v15, 3, v{ATR}")
    a("v_lshrrev_b32 v16, 3, v0\nv_mul_lo_u32 v7, v16, s22\nv_bfe_u32 v16, v0, 4, 1\nv_lshlrev_b32 v16, 2, v16\nv_and_b32 v18, 7, v0\nv_xor_b32 v16, v16, v18\nv_lshl_add_u32 v7, v16, 4, v7")
    XF = 128; ACC1 = 96; ACC2 = 64; WF = 48; TMP = 24; T = TMP
    def rd_x(g): return f"ds_read_b128 {vr(XF+4*g,4)}, v{AX+g%4}"
    def rd_w(g, t):
        ks = g % 4; w = WF + 8 * (g % 2) + 4 * t; ad = AWB if t else AWA
        return f"ds_read_b64_tr_b16 {vr(w,2)}, v{ad} offset:{ks*4096}\nds_read_b64_tr_b16 {vr(w+2,2)}, v{ad} offset:{ks*4096+1024}"
    def mfma(acc, g, wreg, orientB):
        x = vr(XF+4*g, 4); w = vr(wreg, 4)
        c = "0" if g == 0 else vr(acc, 16)
        A, B = (w, x) if orientB else (x, w)
        a(f"v_mfma_f32_32x32x16_bf16 {vr(acc,16)}, {A}, {B}, {c}")
    def dq(it, unit): return dw(it, unit, 0, 26, VWQ)
    def wb_ops(isq):
        if isq: return [dq(m, WB_UNIT[m]) for m in range(8)]
        return [dw(m, WB_UNIT[m], hf, 26) for m in range(8) for hf in range(2)]
    def stage1(orientB, isq):
        stream = []
        for it in range(2, 8): stream += grp(it)
        wb = wb_ops(isq)
        nwb_in = 4 if isq else 8
        stream += wb[:nwb_in]
        issued = 8
        a.stamp(2)
        a("s_waitcnt vmcnt(4)\ns_barrier")
        a.stamp(3)
        a(rd_x(0)); a(rd_w(0, 0)); a(rd_w(0, 1))
        for g in range(32):
            it = g // 4; w = WF + 8 * (g % 2)
            last = (g % 4 == 3)
            if last and g < 31:
                a(f"s_waitcnt vmcnt({issued - 4*(it+2)}) lgkmcnt(0)\ns_barrier")
                if it + 1 in (2, 5): a.stamp(4 if it + 1 == 2 else 5)
                mfma(ACC1, g, w, orientB)
                d = 2*UNIT if ((it + 1) % 3) else -4*UNIT
                for k in range(4): a(f"v_add_u32 v{AX+k}, {d}, v{AX+k}")
                a(f"v_add_u32 v{AWA}, {d}, v{AWA}\nv_add_u32 v{AWB}, {d}, v{AWB}")
                a(rd_x(g+1)); a(rd_w(g+1, 0)); a(rd_w(g+1, 1))
                mfma(ACC1+16, g, w+4, orientB)
            else:
                if g < 31:
                    a(rd_x(g+1)); a(rd_w(g+1, 0)); a("s_waitcnt lgkmcnt(5)")
                    mfma(ACC1, g, w, orientB)
                    a(rd_w(g+1, 1)); a("s_waitcnt lgkmcnt(5)")
                    mfma(ACC1+16, g, w+4, orientB)
                else:
                    a("s_waitcnt lgkmcnt(0)")
                    mfma(ACC1, g, w, orientB); mfma(ACC1+16, g, w+4, orientB)
            k = g + 1
            if g == 0: a(stream[0]); issued += 1
            if k < len(stream): a(stream[k]); issued += 1
        return wb[nwb_in:]
    def p2_setup():
        lbl[0] += 1; n = lbl[0]
        a("s_lshl_b32 s23, s30, 2\ns_xor_b32 s20, s31, s23")
        a(f"s_cmp_eq_u32 s20, 7\ns_cbranch_scc1 L_p2s_at{n}")
        a("v_lshrrev_b32 v3, 3, v0\nv_lshlrev_b32 v2, 12, v3")
        a("v_lshrrev_b32 v3, 4, v0\nv_xor_b32 v3, v3, v0\nv_and_b32 v3, 7, v3\nv_lshl_add_u32 v2, v3, 4, v2")
        a("s_lshl_b32 s24, s19, 19\ns_lshl_b32 s23, s30, 11\ns_add_u32 s24, s24, s23")
        a(f"s_and_b32 s21, s19, 3\ns_lshl_b32 s21, s21, 2\ns_movk_i32 s22, 128\ns_mov_b32 s32, {64*4096}")
        a(f"s_mov_b32 s4, s{P_WSP}\ns_mov_b32 s5, s{P_WSP+1}\ns_mov_b32 s6, {hx(2048*2048*2)}\ns_mov_b32 s62, 0")
        a(f"s_branch L_p2s_d{n}")
        a(f"L_p2s_at{n}:")
        a("v_lshrrev_b32 v3, 5, v0\nv_and_b32 v4, 3, v3\nv_lshlrev_b32 v4, 2, v4\nv_and_b32 v5, 31, v0\nv_xor_b32 v4, v4, v5\nv_lshlrev_b32 v4, 4, v4\nv_lshl_add_u32 v2, v3, 10, v4")
        a(f"s_lshl_b32 s24, s30, 9\ns_mov_b32 s21, 0\ns_mov_b32 s22, {32*1024}\ns_mov_b32 s32, {16*1024}")
        a(f"s_mov_b32 s4, s{P_WO}\ns_mov_b32 s5, s{P_WO+1}\ns_mov_b32 s6, {hx(512*512*2)}\ns_mov_b32 s62, 6")
        a(f"L_p2s_d{n}:")
    def p2_pre_ops():
        L = []
        for sl in range(8):
            for hf in range(2):
                t = ""
                if hf == 0:
                    t += f"s_add_u32 s23, s21, {sl}\ns_and_b32 s23, s23, 15\ns_mul_i32 s34, s23, s22\ns_add_u32 s34, s34, s24\n"
                    t += f"s_add_u32 s63, s62, {sl}\ns_cmp_ge_u32 s63, 10\ns_cselect_b32 s23, 10, 0\ns_sub_u32 s63, s63, s23\ns_lshl_b32 s63, s63, 14\ns_add_u32 m0, s63, s27\n"
                else:
                    t += f"s_add_u32 s34, s34, s32\ns_add_u32 m0, m0, 8192\n"
                t += "buffer_load_dwordx4 v2, s[4:7], s34 offen lds"
                L.append(t)
        return L

    a(f"s_waitcnt lgkmcnt(0)\ns_add_u32 s28, s28, {hx(TAGINC)}")
    a("s_cmp_eq_u32 s22, 3072\ns_cbranch_scc1 L_qkv")
    rest = stage1(True, False)
    a.stamp(6)
    C1, C0 = 18, 20
    a(f"v_mov_b32 v{C1}, {hx(f2u(-GK*0.044715))}\nv_mov_b32 v{C1+1}, {hx(f2u(-GK*0.044715))}\nv_mov_b32 v{C0}, {hx(f2u(-GK))}\nv_mov_b32 v{C0+1}, {hx(f2u(-GK))}")
    ge = gelu_ops([ACC1 + 2*i for i in range(16)], TMP, C1, C0)
    weave(a, ge[:len(ge)//2], rest)
    for x in ge[len(ge)//2:]: a(x)
    a(f"v_pk_add_f32 {vr(T,2)}, {vr(ACC1,2)}, {vr(ACC1+2,2)}\nv_pk_add_f32 {vr(T+2,2)}, {vr(ACC1+4,2)}, {vr(ACC1+6,2)}")
    for i in range(4, 16, 2):
        a(f"v_pk_add_f32 {vr(T,2)}, {vr(T,2)}, {vr(ACC1+2*i,2)}\nv_pk_add_f32 {vr(T+2,2)}, {vr(T+2,2)}, {vr(ACC1+2*i+2,2)}")
    a(f"v_pk_add_f32 {vr(T,2)}, {vr(T,2)}, {vr(T+2,2)}\nv_add_f32 v{T}, v{T}, v{T+1}")
    a(f"v_mov_b32 v{T+1}, v{T}")
    a(f"v_permlane32_swap_b32 v{T}, v{T+1}")
    a(f"v_add_f32 v{T}, v{T}, v{T+1}\nv_mul_f32 v{T}, {hx(f2u(1/64.))}, v{T}")
    a(f"v_mov_b32 v{T+1}, v{T}")
    for i in range(16):
        d = T + 6 + 2 * (i % 4); s = T + 2 + 2 * (i % 2)
        a(f"v_pk_add_f32 {vr(d,2)}, {vr(ACC1+2*i,2)}, {vr(T,2)} neg_lo:[0,1] neg_hi:[0,1]")
        if i < 2: a(f"v_pk_mul_f32 {vr(s,2)}, {vr(d,2)}, {vr(d,2)}")
        else: a(f"v_pk_fma_f32 {vr(s,2)}, {vr(d,2)}, {vr(d,2)}, {vr(s,2)}")
    a(f"v_pk_add_f32 {vr(T+2,2)}, {vr(T+2,2)}, {vr(T+4,2)}\nv_add_f32 v{T+1}, v{T+2}, v{T+3}\nv_mov_b32 v{T+2}, v{T+1}")
    a(f"v_permlane32_swap_b32 v{T+1}, v{T+2}\nv_add_f32 v{T+1}, v{T+1}, v{T+2}")
    a.stamp(7)
    a("s_barrier")
    a(f"v_and_b32 v{T+2}, 31, v1\nv_lshlrev_b32 v{T+2}, 3, v{T+2}")
    a(f"s_xor_b32 s23, s16, 4\ns_lshl_b32 s23, s23, 12\ns_add_u32 s23, s23, {SCR}\nv_add_u32 v{T+3}, s23, v{T+2}")
    a(f"ds_write_b64 v{T+3}, {vr(T,2)}")
    a(f"v_xor_b32 v{T+3}, {UNIT}, v{T+3}")
    a("s_waitcnt vmcnt(0) lgkmcnt(0)\ns_barrier")
    a(f"ds_read_b64 {vr(T+4,2)}, v{T+3}")
    a(f"s_lshl_b32 s23, s19, 3\ns_add_u32 s23, s23, s20\ns_lshl_b32 s23, s23, 11\ns_lshl_b32 s34, s17, 9\ns_add_u32 s35, s23, s34\ns_add_u32 s35, s35, {hx(OFF_EX)}")
    a(f"v_lshlrev_b32 v{T+2}, 1, v{T+2}")
    a("s_waitcnt lgkmcnt(0)")
    a(f"v_sub_f32 v{T+6}, v{T}, v{T+4}\nv_add_f32 v{T}, v{T}, v{T+4}\nv_mul_f32 v{T+8}, 0.5, v{T}")
    a(f"v_add_f32 v{T+9}, v{T+1}, v{T+5}\nv_mul_f32 v{T+6}, v{T+6}, v{T+6}\nv_mov_b32 v{T+7}, {hx(f2u(32.0))}\nv_fma_f32 v{T+9}, v{T+6}, v{T+7}, v{T+9}")
    a(f"v_mov_b32 v{T+10}, s28\nv_not_b32 v{T+11}, v{T+10}")
    a("s_cmp_lg_u32 s18, 0\ns_cbranch_scc1 L_z_nopub")
    a("s_mov_b64 exec, 0xffffffff")
    a(f"buffer_store_dwordx4 {vr(T+8,4)}, v{T+2}, s[12:15], s35 offen sc1")
    a("s_mov_b64 exec, -1")
    a("L_z_nopub:")
    a.stamp(8)
    cur = [3]
    def setw(unit):
        d = (unit - cur[0]) * UNIT; cur[0] = unit
        a(f"v_add_u32 v{AWA}, {d}, v{AWA}\nv_add_u32 v{AWB}, {d}, v{AWB}")
    POLL_AT = cfg.get("poll_at", 14); POLL_LEAD = cfg.get("poll_lead", 5); FLAG_AT = cfg.get("flag_at", 22)
    PV = T + 4
    def poll_issue():
        for i in range(4):
            a(f"buffer_load_dwordx4 {vr(T+8+4*i,4)}, v{PV + (1 if i == 3 else 0)}, s[12:15], s35 offen sc1")
            if i < 2: a("s_add_u32 s35, s35, 4096")
        a("s_sub_u32 s35, s35, 8192")
    setw(WB_UNIT[0]); a(rd_w(0, 0)); a(rd_w(0, 1))
    for g in range(32):
        if g == POLL_AT - POLL_LEAD:
            a(f"s_lshl_b32 s35, s19, 14\ns_add_u32 s35, s35, s34\ns_add_u32 s35, s35, {hx(OFF_EX)}")
            a(f"v_lshrrev_b32 v{PV}, 5, v1\nv_lshl_add_u32 v{PV}, v{PV}, 11, v{T+2}\nv_add_u32 v{PV+1}, 4096, v{T+2}")
            poll_issue()
        if g == POLL_AT:
            a.stamp(9)
            a("L_z_poll:")
            a("s_waitcnt vmcnt(0)")
            a(f"v_mov_b32 v{T}, s28\nv_not_b32 v{T+1}, v{T}")
            a(f"v_xor_b32 v{T+6}, v{T+10}, v{T}\nv_xor_b32 v{T+7}, v{T+11}, v{T+1}\nv_or_b32 v{T+6}, v{T+6}, v{T+7}")
            for i in range(1, 4):
                a(f"v_xor_b32 v{T+7}, v{T+10+4*i}, v{T}\nv_or_b32 v{T+6}, v{T+6}, v{T+7}\nv_xor_b32 v{T+7}, v{T+11+4*i}, v{T+1}\nv_or_b32 v{T+6}, v{T+6}, v{T+7}")
            a(f"v_cmp_ne_u32 vcc, 0, v{T+6}")
            a("s_cbranch_vccz L_z_polled")
            a(f"s_add_u32 s33, s33, 1\ns_cmp_gt_u32 s33, {SPIN_MAX}\ns_cbranch_scc1 L_z_polled")
            poll_issue()
            a("s_branch L_z_poll")
            a("L_z_polled:")
            a.stamp(10)
            a(f"v_add_f32 v{T}, v{T+8}, v{T+12}\nv_add_f32 v{T}, v{T}, v{T+16}\nv_fma_f32 v{T}, v{T+20}, 0.5, v{T}\nv_mov_b32 v{T+1}, v{T}")
            a(f"v_permlane32_swap_b32 v{T}, v{T+1}\nv_add_f32 v{T}, v{T}, v{T+1}\nv_mul_f32 v{T}, {hx(f2u(1/7.))}, v{T}")
            a(f"v_mov_b32 v{T+7}, {hx(f2u(128.0))}")
            for i in range(4):
                a(f"v_sub_f32 v{T+8+4*i}, v{T+8+4*i}, v{T}\nv_mul_f32 v{T+8+4*i}, v{T+8+4*i}, v{T+8+4*i}\nv_fma_f32 v{T+9+4*i}, v{T+8+4*i}, v{T+7}, v{T+9+4*i}")
            a(f"v_add_f32 v{T+6}, v{T+9}, v{T+13}\nv_add_f32 v{T+6}, v{T+6}, v{T+17}\nv_fma_f32 v{T+6}, v{T+21}, 0.5, v{T+6}\nv_mov_b32 v{T+7}, v{T+6}")
            a(f"v_permlane32_swap_b32 v{T+6}, v{T+7}\nv_add_f32 v{T+6}, v{T+6}, v{T+7}")
            a(f"v_mov_b32 v{T+7}, {hx(f2u(1e-5))}\nv_mov_b32 v{T+8}, {hx(f2u(1/896.))}\nv_fma_f32 v{T+6}, v{T+6}, v{T+8}, v{T+7}\nv_rsq_f32 v{T+6}, v{T+6}")
            a(f"v_mul_f32 v{T}, v{T}, v{T+6}\nv_mov_b32 v{T+7}, v{T+6}\nv_mov_b32 v{T+1}, v{T}")
            for i in range(16):
                a(f"v_pk_fma_f32 {vr(ACC1+2*i,2)}, {vr(ACC1+2*i,2)}, {vr(T+6,2)}, {vr(T,2)} neg_lo:[0,0,1] neg_hi:[0,0,1]")
            for x in pack_ops(ACC1, ACC1, 32): a(x)
            a(f"v_and_b32 v{T}, 31, v1\nv_bfe_u32 v{T+1}, v1, 1, 1\nv_lshlrev_b32 v{T+1}, 2, v{T+1}\nv_bfe_u32 v{T+6}, v1, 2, 1\nv_lshl_add_u32 v{T+1}, v{T+6}, 1, v{T+1}")
            a(f"v_and_b32 v{T+6}, 1, v1\nv_add_u32 v{T+1}, v{T+1}, v{T+6}\nv_lshrrev_b32 v{T+6}, 5, v1\nv_xor_b32 v{T+1}, v{T+1}, v{T+6}")
            a(f"v_lshlrev_b32 v{T+1}, 4, v{T+1}\nv_lshl_add_u32 v{T}, v{T}, 7, v{T+1}")
            a(f"s_lshl_b32 s23, s16, 12\ns_add_u32 s23, s23, {SCR}")
            a(f"v_add_u32 v{T}, s23, v{T}")
            for u in range(4):
                if u: a(f"v_xor_b32 v{T+1}, {32*u}, v{T}")
                a(f"ds_write_b128 v{T+(1 if u else 0)}, {vr(ACC1+4*u,4)}")
            a(f"v_bfe_u32 v{T+1}, v1, 3, 1\nv_lshlrev_b32 v{T+1}, 6, v{T+1}\nv_bfe_u32 v{T+6}, v1, 2, 1\nv_lshl_add_u32 v{T+1}, v{T+6}, 4, v{T+1}")
            a(f"v_xor_b32 v{T}, v{ATR}, v{T+1}\nv_add_u32 v{T}, s23, v{T}")
            a(f"v_xor_b32 v{T+1}, 32, v{T}\nv_xor_b32 v{T+6}, 64, v{T}\nv_xor_b32 v{T+7}, 0x60, v{T}")
            a("s_waitcnt lgkmcnt(0)")
            for ct in range(2):
                for ks in range(2):
                    d = ACC1 + 16 + 8*ct + 4*ks
                    a(f"ds_read_b64_tr_b16 {vr(d,2)}, v{T + (6 if ct else 0)} offset:{ks*2048}")
                    a(f"ds_read_b64_tr_b16 {vr(d+2,2)}, v{T + (7 if ct else 1)} offset:{ks*2048+512}")
            a(f"s_lshl_b32 s23, s20, 2\ns_add_u32 s23, s23, s18\ns_lshl_b32 s23, s23, 7\ns_lshl_b32 s35, s19, 3\ns_add_u32 s23, s23, s35\ns_lshl_b32 s35, s17, 1\ns_add_u32 s23, s23, s35\ns_lshl_b32 s23, s23, 10")
            a(f"s_add_u32 s35, s23, {2*128*1024}")
            a(f"v_lshlrev_b32 v{T+8}, 4, v1")
            a("s_waitcnt lgkmcnt(0)")
            for ct in range(2):
                for ks in range(2):
                    d = ACC1 + 16 + 8*ct + 4*ks
                    a(f"buffer_store_dwordx4 {vr(d,4)}, v{T+8}, s[12:15], s{35 if ct else 23} offen offset:{ks*1024} sc1")
            a.stamp(11)
        if g == FLAG_AT:
            a("s_waitcnt vmcnt(0)\ns_barrier")
            a("s_cmp_lg_u32 s16, 0\ns_cbranch_scc1 L_z_nf")
            a(f"s_lshl_b32 s23, s19, 4\ns_add_u32 s23, s23, s20\ns_lshl_b32 s23, s23, 7\ns_add_u32 s23, s23, {hx(F_P1)}")
            set_flag(23)
            a("L_z_nf:")
        w = WF + 8 * (g % 2)
        if g < 31:
            if (g + 1) % 4 == 0: setw(WB_UNIT[(g + 1) // 4])
            a(rd_w(g+1, 0)); a("s_waitcnt lgkmcnt(4)")
            mfma(ACC2, g, w, True)
            a(rd_w(g+1, 1)); a("s_waitcnt lgkmcnt(4)")
            mfma(ACC2+16, g, w+4, True)
        else:
            a("s_waitcnt lgkmcnt(0)\ns_barrier")
            mfma(ACC2, g, w, True); mfma(ACC2+16, g, w+4, True)
    a.stamp(12)
    a(f"s_lshl_b32 s25, s19, 2\ns_add_u32 s25, s25, s17\ns_mul_i32 s25, s25, 56\ns_lshl_b32 s23, s20, 3\ns_add_u32 s25, s25, s23\ns_lshl_b32 s23, s18, 1\ns_add_u32 s25, s25, s23\ns_lshl_b32 s25, s25, 10\ns_add_u32 s25, s25, {hx(OFF_Z1)}")
    a(f"s_lshl_b32 s26, s19, 3\ns_add_u32 s26, s26, s20\ns_lshl_b32 s26, s26, 7\ns_add_u32 s26, s26, {hx(F_Z1)}")
    p2_setup()
    weave(a, gelu_ops([ACC2 + 2*i for i in range(16)], TMP, C1, C0) + pack_ops(ACC2, ACC2, 32), p2_pre_ops())
    a.stamp(13)
    a("s_add_u32 s23, s25, 4096")
    a(f"v_lshlrev_b32 v{T+8}, 4, v1")
    for ct in range(2):
        for u in range(2):
            a(f"buffer_store_dwordx4 {vr(ACC2+8*ct+4*u,4)}, v{T+8}, s[12:15], s{23 if ct else 25} offen offset:{u*1024} sc1")
    a("s_branch L_p1_done")
    a("L_qkv:")
    rest = stage1(False, True)
    a.stamp(6)
    CL, CE = 18, 20
    a(f"v_mov_b32 v{CL}, {hx(f2u(LOG2E))}\nv_mov_b32 v{CL+1}, {hx(f2u(LOG2E))}\nv_mov_b32 v{CE}, {hx(f2u(1e-6))}\nv_mov_b32 v{CE+1}, {hx(f2u(1e-6))}")
    weave(a, phi_ops([ACC1 + 2*i for i in range(8)], TMP, CL, CE), rest)
    a(f"s_lshl_b32 s25, s20, 8\ns_add_u32 s25, s25, {hx(F_ZERO)}")
    a(f"v_and_b32 v22, 1, v1\nv_lshlrev_b32 v22, 7, v22")
    a("buffer_load_dword v23, v22, s[12:15], s25 offen sc1")
    for x in pack_ops(ACC1, ACC1, 32): a(x)
    ONE = TMP
    for i in range(4): a(f"v_mov_b32 v{ONE+i}, 0x3f803f80")
    KVA, ZA = ACC1 + 16, ACC2 + 16
    a(f"v_mfma_f32_32x32x16_bf16 {vr(KVA,16)}, {vr(ACC1,4)}, {vr(ACC1+8,4)}, 0")
    a(f"v_mfma_f32_32x32x16_bf16 {vr(ZA,16)}, {vr(ACC1,4)}, {vr(ONE,4)}, 0")
    a(f"v_mfma_f32_32x32x16_bf16 {vr(KVA,16)}, {vr(ACC1+4,4)}, {vr(ACC1+12,4)}, {vr(KVA,16)}")
    a(f"v_mfma_f32_32x32x16_bf16 {vr(ZA,16)}, {vr(ACC1+4,4)}, {vr(ONE,4)}, {vr(ZA,16)}")
    a.stamp(7)
    a("s_barrier")
    a(f"s_mul_i32 s23, s17, 4352\ns_mul_i32 s34, s18, 2176\ns_add_u32 s23, s23, s34\ns_add_u32 s23, s23, {SCR}")
    a(f"v_bfe_u32 v{T+4}, v1, 4, 1\nv_mul_u32_u24 v{T+4}, 1088, v{T+4}\nv_lshrrev_b32 v{T+5}, 5, v1\nv_lshl_add_u32 v{T+4}, v{T+5}, 5, v{T+4}\nv_add_u32 v{T+4}, s23, v{T+4}")
    a(f"v_and_b32 v{T+5}, 15, v1\nv_lshl_add_u32 v{T+6}, v{T+5}, 6, v{T+4}")
    a(f"v_and_b32 v{T+7}, 16, v1\nv_cmp_ne_u32 vcc, 0, v{T+7}")
    for i in range(8): a(f"v_cndmask_b32 v{KVA+i}, v{KVA+i}, v{KVA+8+i}, vcc")
    for i in range(8): a(f"v_cndmask_b32 v{ZA+i}, v{ZA+i}, v{ZA+8+i}, vcc")
    a(f"ds_write_b128 v{T+6}, {vr(KVA,4)}\nds_write_b128 v{T+6}, {vr(KVA+4,4)} offset:16")
    a(f"v_cmp_eq_u32 vcc, 0, v{T+5}\ns_and_saveexec_b64 s[60:61], vcc")
    a(f"ds_write_b128 v{T+4}, {vr(ZA,4)} offset:1024\nds_write_b128 v{T+4}, {vr(ZA+4,4)} offset:1040")
    a("s_mov_b64 exec, -1")
    a("s_waitcnt vmcnt(0) lgkmcnt(0)\ns_barrier")
    a(f"v_lshlrev_b32 v{T+4}, 2, v0\nv_add_u32 v{T+5}, {SCR}, v{T+4}")
    for k in range(3):
        for rg in range(4):
            a(f"ds_read_b32 v{T+8+4*k+rg}, v{T+5} offset:{rg*4352 + k*2048}")
    a("v_cmp_ne_u32 vcc, s28, v23\ns_cbranch_vccz L_q_zok")
    poll(22, 25, 23)
    a("L_q_zok:")
    a("s_waitcnt lgkmcnt(0)")
    for k in range(3):
        b = T + 8 + 4*k
        a(f"v_add_f32 v{b}, v{b}, v{b+1}\nv_add_f32 v{b+2}, v{b+2}, v{b+3}\nv_add_f32 v{b}, v{b}, v{b+2}")
    a(f"s_mul_i32 s23, s20, 4352\ns_add_u32 s23, s23, {hx(OFF_KV)}")
    a(f"buffer_atomic_add_f32 v{T+8}, v{T+4}, s[12:15], s23 offen\nbuffer_atomic_add_f32 v{T+12}, v{T+4}, s[12:15], s23 offen offset:2048")
    a("s_cmp_lg_u32 s16, 0\ns_cbranch_scc1 L_q_s2")
    a("s_add_u32 s23, s23, 4096")
    a(f"buffer_atomic_add_f32 v{T+16}, v{T+4}, s[12:15], s23 offen")
    a("L_q_s2:")
    if cfg.get("wsp_touch", 1):
        srd(a, 4, P_WSP, 2048*2048*2)
        a(f"v_lshrrev_b32 v{T+5}, 4, v0\nv_lshlrev_b32 v{T+5}, 12, v{T+5}\nv_and_b32 v{T+6}, 15, v0\nv_lshl_add_u32 v{T+5}, v{T+6}, 7, v{T+5}")
        a("s_lshl_b32 s23, s19, 2\ns_and_b32 s34, s31, 3\ns_add_u32 s23, s23, s34\ns_lshl_b32 s23, s23, 17\ns_lshl_b32 s34, s30, 11\ns_add_u32 s23, s23, s34")
        a(f"buffer_load_dword v23, v{T+5}, s[4:7], s23 offen")
    a.stamp(8)
    AQ = AWA
    a(f"v_bfe_u32 v{T+4}, v1, 3, 1\nv_xor_b32 v{T+4}, s18, v{T+4}\nv_lshl_add_u32 v{AQ}, v{T+4}, 6, v{ATR}")
    curq = [0]
    def readsq(g):
        ks = g % 4; w = WF + 4 * (g % 4)
        if ks == 0:
            u = WB_UNIT[g // 4]; d = (u - curq[0]) * UNIT; curq[0] = u
            a(f"v_add_u32 v{AQ}, {d}, v{AQ}")
        a(f"ds_read_b64_tr_b16 {vr(w,2)}, v{AQ} offset:{ks*2048}")
        a(f"ds_read_b64_tr_b16 {vr(w+2,2)}, v{AQ} offset:{ks*2048+512}")
    readsq(0); readsq(1)
    for g in range(32):
        if g < 30:
            readsq(g + 2); a("s_waitcnt lgkmcnt(4)")
        else:
            a(f"s_waitcnt lgkmcnt({2*(31-g)})")
        if g == 31: a("s_barrier")
        mfma(ACC2, g, WF + 4 * (g % 4), True)
    a.stamp(12)
    a(f"s_lshl_b32 s25, s19, 2\ns_add_u32 s25, s25, s17\ns_lshl_b32 s25, s25, 5\ns_lshl_b32 s23, s20, 2\ns_add_u32 s25, s25, s23\ns_lshl_b32 s23, s18, 1\ns_add_u32 s25, s25, s23\ns_lshl_b32 s25, s25, 10\ns_add_u32 s25, s25, {hx(OFF_PQ)}")
    a(f"s_lshl_b32 s26, s19, 4\ns_add_u32 s26, s26, s20\ns_lshl_b32 s26, s26, 7\ns_add_u32 s26, s26, {hx(F_P1 + 8*128)}")
    for x in phi_ops([ACC2 + 2*i for i in range(8)], TMP, CL, CE) + pack_ops(ACC2, ACC2, 16): a(x)
    a(f"v_lshlrev_b32 v{T+8}, 4, v1")
    for u in range(2):
        a(f"buffer_store_dwordx4 {vr(ACC2+4*u,4)}, v{T+8}, s[12:15], s25 offen offset:{u*1024} sc1")
    a("s_waitcnt vmcnt(0)\ns_barrier")
    a("s_cmp_lg_u32 s16, 0\ns_cbranch_scc1 L_q_nf")
    set_flag(26)
    a("L_q_nf:")
    a.stamp(13)
    a("L_late_pre:")
    p2_setup()
    for x in p2_pre_ops(): a(x)
    a("s_mov_b32 s26, 0\ns_branch L_p1_done")
    a("L_misc:")
    srd(a, 8, P_GW, 1024)
    a("v_mov_b32 v4, 0\nv_mov_b32 v5, 0\nv_mov_b32 v6, 0\nv_mov_b32 v7, 0\nv_lshlrev_b32 v2, 4, v0")
    a(f"s_mul_i32 s23, s19, 2176\ns_add_u32 s23, s23, {hx(OFF_KV)}")
    a("v_cmp_gt_u32 vcc, 136, v0\ns_and_saveexec_b64 s[60:61], vcc\ns_cbranch_execz L_m_nz")
    a("buffer_store_dwordx4 v[4:7], v2, s[12:15], s23 offen sc1")
    a("L_m_nz:\ns_mov_b64 exec, -1")
    a("s_waitcnt vmcnt(0) lgkmcnt(0)\ns_barrier")
    a(f"s_add_u32 s28, s28, {hx(TAGINC)}")
    a("s_cmp_lg_u32 s16, 0\ns_cbranch_scc1 L_m_g")
    a(f"s_lshl_b32 s23, s19, 7\ns_add_u32 s23, s23, {hx(F_ZERO)}")
    set_flag(23)
    a("L_m_g:")
    a("v_lshlrev_b32 v2, 4, v1")
    a("buffer_load_dwordx4 v[4:7], v2, s[8:11], 0 offen")
    a("s_lshl_b32 s23, s19, 17\ns_lshl_b32 s34, s16, 14\ns_add_u32 s23, s23, s34")
    for i in range(16):
        if i % 4 == 0 and i: a("s_add_u32 s23, s23, 4096")
        a(f"buffer_load_dwordx4 {vr(16+4*i,4)}, v2, s[4:7], s23 offen offset:{(i%4)*1024}")
    a("s_waitcnt vmcnt(0)")
    for i in range(16): a(f"v_dot2_f32_bf16 v{96+i}, v{16+4*i}, v4, 0")
    for k in range(1, 4):
        for i in range(16): a(f"v_dot2_f32_bf16 v{96+i}, v{16+4*i+k}, v{4+k}, v{96+i}")
    a("s_nop 2")
    for sh in ("row_shr:1", "row_shr:2", "row_shr:4", "row_shr:8", "row_bcast:15 row_mask:0xa", "row_bcast:31 row_mask:0xc"):
        for i in range(16):
            a(f"v_add_f32_dpp v{96+i}, v{96+i}, v{96+i} {sh}" + (" row_mask:0xf" if "mask" not in sh else "") + " bank_mask:0xf")
    a("v_mov_b32 v8, 0")
    for i in range(16): a(f"v_readlane_b32 s34, v{96+i}, 63\nv_writelane_b32 v8, s34, {i}")
    a(f"v_mul_f32 v8, {hx(f2u(-LOG2E))}, v8\nv_exp_f32 v8, v8\nv_add_f32 v8, 1.0, v8\nv_rcp_f32 v8, v8")
    a(f"s_lshl_b32 s23, s19, 9\ns_lshl_b32 s34, s16, 6\ns_add_u32 s23, s23, s34\ns_add_u32 s23, s23, {hx(OFF_GATE)}")
    a("v_lshlrev_b32 v2, 2, v1\ns_mov_b64 exec, 0xffff")
    a("buffer_store_dword v8, v2, s[12:15], s23 offen sc1")
    a("s_mov_b64 exec, -1\ns_waitcnt vmcnt(0)\ns_barrier")
    a("s_cmp_lg_u32 s16, 0\ns_cbranch_scc1 L_late_pre")
    a(f"s_lshl_b32 s23, s19, 11\ns_add_u32 s23, s23, {hx(F_P1 + 7*128)}")
    set_flag(23)
    a("s_branch L_late_pre")

    a("L_p1_done:")
    if Asm.STAMPS:
        a.stamp(14); a.stamp_flush(0, wait=False); a("s_mov_b64 exec, -1"); a.stamp_init()
    a("s_cmp_eq_u32 s20, 7\ns_cbranch_scc1 L_attn")
    a("s_cmp_ge_u32 s16, 4\ns_cbranch_scc1 L_sp_help")
    D = cfg.get("D", 5); AF = 128; ACC = 64; BF = 32; Z1 = 224; AX = 8
    NA = 4 * D + 4
    a("v_lshlrev_b32 v2, 4, v1")
    srd(a, 8, P_BSP, 4096)
    a("v_and_b32 v4, 31, v1\nv_lshrrev_b32 v5, 5, v1\nv_lshlrev_b32 v3, 1, v4\ns_lshl_b32 s23, s19, 8")
    for tt in range(4): a(f"buffer_load_ushort v{16+tt}, v3, s[8:11], s23 offen offset:{tt*64}")
    a("s_lshl_b32 s24, s20, 2\ns_add_u32 s24, s24, s17\ns_lshl_b32 s25, s24, 1\ns_add_u32 s24, s25, s30\ns_lshl_b32 s24, s24, 16")
    a("v_lshrrev_b32 v6, 1, v4\nv_and_b32 v6, 7, v6\nv_xor_b32 v6, v6, v5\nv_lshlrev_b32 v6, 4, v6")
    a(f"v_lshl_add_u32 v{AX}, v4, 7, v6")
    for k in range(1, 4): a(f"v_xor_b32 v{AX+k}, {32*k}, v{AX}")
    a("s_waitcnt vmcnt(0)\ns_barrier")
    a.stamp(1)
    a("s_cmp_eq_u32 s30, 0\ns_cselect_b32 s23, -1, 0")
    for tt in range(4): a(f"v_lshlrev_b32 v{16+tt}, 16, v{16+tt}\nv_and_b32 v{16+tt}, s23, v{16+tt}")
    a(f"v_and_b32 v3, 7, v1\nv_lshlrev_b32 v3, 11, v3\ns_lshl_b32 s34, s30, 14\ns_lshl_b32 s23, s20, 7\ns_add_u32 s34, s34, s23\ns_add_u32 s34, s34, {hx(F_P1)}")
    a("buffer_load_dword v7, v3, s[12:15], s34 offen sc1")
    for tt in range(4):
        for r in range(16): a(f"v_mov_b32 v{ACC+16*tt+r}, v{16+tt}")
    a(f"s_mul_i32 s26, s19, {4*56}\ns_add_u32 s26, s26, s25\ns_lshl_b32 s26, s26, 10")
    def bread(g, tt): return f"ds_read_b128 {vr(BF+16*(g%2)+4*tt,4)}, v{AX+g%4} offset:{tt*4096}"
    for g in range(2):
        for tt in range(4): a(bread(g, tt))
    a("s_waitcnt vmcnt(0)\nv_cmp_ne_u32 vcc, s28, v7\ns_cbranch_vccz L_sp_go")
    poll(3, 34, 7)
    a("L_sp_go:")
    a.stamp(2)
    def aload(g):
        sl, ks = divmod(g, 4); t = ""
        if ks == 0: t = f"s_add_u32 s23, s21, {sl}\ns_and_b32 s23, s23, 15\ns_lshl_b32 s23, s23, 12\ns_add_u32 s23, s23, s24\n"
        return t + f"buffer_load_dwordx4 {vr(AF+4*(g%NA),4)}, v2, s[12:15], s23 offen offset:{ks*1024} sc1"
    order = []
    for g in range(4 * D): a(aload(g)); order.append(g)
    ZAT = 64 - 4 * D
    for g in range(64):
        sl, ks = divmod(g, 4)
        a(f"s_waitcnt vmcnt({len(order) - 1 - order.index(g)})")
        for tt in range(4):
            nrd = min(7, (63 - g) * 4 + 3 - tt)
            a(f"s_waitcnt lgkmcnt({nrd})")
            a(f"v_mfma_f32_32x32x16_bf16 {vr(ACC+16*tt,16)}, {vr(AF+4*(g%NA),4)}, {vr(BF+16*(g%2)+4*tt,4)}, {vr(ACC+16*tt,16)}")
            g2 = g + 2
            if g2 < 64:
                if tt == 0:
                    if g2 % 8 == 0:
                        a("s_barrier")
                        if (g2 // 8) % 2 == 1: a.stamp(3 + g2 // 16)
                    if g2 >= 4:
                        s2 = g2 // 4
                        d = UNIT if (s2 % 10) else -UNIT * 9
                        a(f"v_add_u32 v{AX+g2%4}, {d}, v{AX+g2%4}")
                a(bread(g2, tt))
            if tt == 1 and g + 4 * D < 64:
                a(aload(g + 4 * D)); order.append(g + 4 * D)
            if tt == 1 and g == ZAT:
                a(f"s_add_u32 s23, s26, {hx(OFF_Z1)}")
            if tt == 1 and ZAT <= g < ZAT + 8:
                k = g - ZAT; t2, u = divmod(k, 2)
                a(f"buffer_load_dwordx4 {vr(Z1+4*k,4)}, v2, s[12:15], s23 offen offset:{u*1024} sc1")
                if u == 1: a(f"s_add_u32 s23, s23, {56*1024}")
                order.append(("Z", k))
    a.stamp(11)
    a("s_waitcnt vmcnt(0)")
    a(f"s_mul_i32 s23, s30, {hx(OFF_U1-OFF_U0)}\ns_add_u32 s23, s23, s26\ns_add_u32 s23, s23, {hx(OFF_U0)}")
    T2 = 16
    for tt in range(4):
        for p in range(8):
            z = Z1 + 8*tt + p; t = T2 + 2 * (p % 4); c = ACC + 16*tt + 2*p
            a(f"v_lshlrev_b32 v{t}, 16, v{z}\nv_and_b32 v{t+1}, 0xffff0000, v{z}")
            a(f"v_pk_mul_f32 {vr(c,2)}, {vr(c,2)}, {vr(t,2)}")
            a(f"v_cvt_pk_bf16_f32 v{z}, v{c}, v{c+1}")
        for u in range(2):
            a(f"buffer_store_dwordx4 {vr(Z1+8*tt+4*u,4)}, v2, s[12:15], s23 offen offset:{u*1024} sc1")
        if tt < 3: a(f"s_add_u32 s23, s23, {56*1024}")
    a("s_branch L_p2_done")
    def h_setup():
        a("s_lshr_b32 s32, s32, 1\ns_lshl_b32 s27, s17, 10")
        a("v_subrev_u32 v2, s32, v2")
        srd(a, 8, P_WOUT, 896*512*2)
        a("v_and_b32 v6, 255, v0\nv_lshrrev_b32 v3, 3, v6\nv_bfe_u32 v4, v6, 4, 1\nv_lshlrev_b32 v4, 2, v4\nv_and_b32 v5, 7, v6\nv_xor_b32 v4, v4, v5\nv_lshlrev_b32 v4, 4, v4\nv_lshl_add_u32 v3, v3, 10, v4")
    def h_slice(sl, unit):
        a(f"s_add_u32 s23, s21, {sl}\ns_and_b32 s23, s23, 15\ns_mul_i32 s34, s23, s22\ns_add_u32 s34, s34, s24")
        for m in range(4):
            a(f"s_add_u32 m0, s27, {unit*UNIT + m*4096}")
            a("buffer_load_dwordx4 v2, s[4:7], s34 offen lds")
            if m < 3: a("s_add_u32 s34, s34, s32")
    def h_piece(p):
        a(f"s_add_u32 s23, s31, {p}\ns_cmp_ge_u32 s23, 7\ns_cselect_b32 s34, 7, 0\ns_sub_u32 s23, s23, s34\ns_lshl_b32 s34, s23, 17\ns_lshl_b32 s23, s31, 7\ns_add_u32 s34, s34, s23")
        for m in range(4):
            a(f"s_add_u32 m0, s27, {PIECE_UNIT[p]*UNIT + m*4096}")
            a("buffer_load_dwordx4 v3, s[8:11], s34 offen lds")
            if m < 3: a(f"s_add_u32 s34, s34, {32*1024}")
    def helper(sched, need, hooks):
        order = []
        for k in range(7):
            if k in hooks: hooks[k](); order.clear()
            idx = [i for i, it in enumerate(order) if it in need.get(k, [])]
            if idx: a(f"s_waitcnt vmcnt({4*(len(order)-1-max(idx))})")
            a("s_barrier")
            for it in sched.get(k, []):
                if it[0] == "s": h_slice(it[1], it[2])
                else: h_piece(it[1])
                order.append(it[:2])
    a("L_sp_help:")
    a("s_waitcnt vmcnt(0)\ns_barrier")
    a("s_cmp_eq_u32 s26, 0\ns_cbranch_scc1 L_sp_h1\ns_cmp_lg_u32 s16, 4\ns_cbranch_scc1 L_sp_h1")
    set_flag(26)
    a("L_sp_h1:")
    h_setup()
    h_slice(8, 8); h_slice(9, 9)
    def zpoll():
        a(f"s_lshl_b32 s23, s19, 3\ns_add_u32 s23, s23, s20\ns_lshl_b32 s23, s23, 7\ns_add_u32 s23, s23, {hx(F_Z1)}\nv_mov_b32 v6, 0")
        poll(6, 23, 7)
    assert ZAT + 2 >= 8 * 4 + 8, "z1 loads must come after barrier B3"
    helper({0: [("s",10,0)], 1: [("s",11,1),("s",12,2)], 2: [("s",13,3),("s",14,4)], 3: [("s",15,5),("p",0)], 4: [("p",1),("p",2)], 5: [("p",3),("p",4)], 6: [("p",5),("p",6)]},
           {4: [("s",10),("s",11)], 5: [("s",12),("s",13)], 6: [("s",14),("s",15)]}, {3: zpoll})
    a("s_branch L_p2_done")
    a("L_attn:")
    KVL = 4 * UNIT
    a("s_cmp_ge_u32 s16, 4\ns_cbranch_scc1 L_at_help")
    ACC = 128; PQ = 96; ND = 64; WOF = 32; OF = 24; KF = 16; AW = 8
    NPQ = 8
    a("v_lshlrev_b32 v2, 4, v1")
    a(f"s_lshl_b32 s24, s19, 2\ns_add_u32 s24, s24, s17\ns_lshl_b32 s25, s24, 15\ns_add_u32 s26, s25, {hx(OFF_PQ)}")
    a("v_lshrrev_b32 v5, 5, v1\nv_bfe_u32 v6, v1, 2, 2\nv_lshl_add_u32 v14, v5, 3, v6")
    a("v_bfe_u32 v15, v1, 4, 1\nv_lshlrev_b32 v15, 2, v15\nv_and_b32 v7, 1, v1\nv_lshl_add_u32 v15, v7, 1, v15\nv_bfe_u32 v7, v1, 1, 1\nv_add_u32 v15, v15, v7")
    a(f"v_lshlrev_b32 v7, 6, v6\nv_lshl_add_u32 v7, v15, 3, v7\nv_lshl_add_u32 v{AW}, v14, 9, v7\nv_add_u32 v{AW}, {AT_RING[0]*UNIT}, v{AW}")
    for k in range(1, 4): a(f"v_xor_b32 v{AW+k}, {64*k}, v{AW}")
    a(f"v_add_u32 v12, {KVL}, v2")
    a(f"v_mov_b32 v14, {hx(f2u(1e-6))}")
    a(f"v_and_b32 v4, 31, v1\nv_lshlrev_b32 v3, 2, v4\ns_lshl_b32 s23, s24, 7\ns_add_u32 s23, s23, {hx(OFF_GATE)}")
    a("s_waitcnt vmcnt(0)\ns_barrier")
    a.stamp(1)
    a("buffer_load_dword v13, v3, s[12:15], s23 offen sc1")
    def pqload(h):
        if h % 4 == 0 and h: a("s_add_u32 s26, s26, 4096")
        a(f"buffer_load_dwordx4 {vr(PQ+4*(h%NPQ),4)}, v2, s[12:15], s26 offen offset:{(h%4)*1024} sc1")
    for h in range(NPQ): pqload(h)
    def woread(h, dt):
        ks = h % 2; w = WOF + 4 * dt
        off = ks * 8192 + (dt >> 2) * 256
        a(f"ds_read_b64_tr_b16 {vr(w,2)}, v{AW+(dt&3)} offset:{off}")
        a(f"ds_read_b64_tr_b16 {vr(w+2,2)}, v{AW+(dt&3)} offset:{off+2048}")
    def kvread(h): a(f"ds_read_b128 {vr(KF+4*(h%2),4)}, v12 offset:{h*1024}")
    def small(h):
        a(f"s_waitcnt vmcnt({min(NPQ-1 if h == 0 else NPQ-2, 31-h)})")
        a(f"v_mfma_f32_32x32x16_bf16 {vr(ND+16*(h%2),16)}, {vr(KF+4*(h%2),4)}, {vr(PQ+4*(h%NPQ),4)}, 0")
    def oval(h):
        n = ND + 16 * (h % 2); o = OF + 4 * (h % 2)
        L = [f"v_add_f32 v{n+8}, v{n+8}, v14", f"v_rcp_f32 v{n+8}, v{n+8}"]
        L += [f"v_mul_f32 v{n+i}, v{n+i}, v{n+8}" for i in range(8)]
        L += [f"v_cvt_pk_bf16_f32 v{o+i}, v{n+2*i}, v{n+2*i+1}" for i in range(4)]
        return L
    for dt in range(8): woread(0, dt)
    a("s_barrier")
    a.stamp(2)
    kvread(0); kvread(1)
    a("s_waitcnt lgkmcnt(0)")
    small(0)
    for x in oval(0): a(x)
    for h in range(32):
        if h < 31:
            if h: a("s_waitcnt lgkmcnt(14)")
            small(h + 1)
            if h + NPQ < 32: pqload(h + NPQ)
        ov = oval(h + 1) if h < 31 else []
        for dt in range(8):
            c = "0" if h == 0 else vr(ACC+16*dt, 16)
            if h: a(f"s_waitcnt lgkmcnt({14 if h < 31 else 14 - 2*dt})")
            a(f"v_mfma_f32_32x32x16_bf16 {vr(ACC+16*dt,16)}, {vr(WOF+4*dt,4)}, {vr(OF+4*(h%2),4)}, {c}")
            if dt == 0 and h % 2 == 1 and h < 31:
                sl = (h + 1) // 2
                if sl % 2 == 0:
                    a("s_barrier")
                    if (sl // 2) % 2 == 1: a.stamp(3 + sl // 4)
                d = (AT_RING[sl % 8] - AT_RING[(sl - 1) % 8]) * UNIT
                for k in range(4): a(f"v_add_u32 v{AW+k}, {d}, v{AW+k}")
            if dt == 0 and h < 30: kvread(h + 2)
            if h < 31: woread(h + 1, dt)
            if dt >= 3:
                for x in ov[(dt-3)*3:(dt-2)*3]: a(x)
    a("s_barrier")
    a.stamp(11)
    a(f"s_lshl_b32 s23, s30, 14\ns_add_u32 s23, s23, s25\ns_add_u32 s23, s23, {hx(OFF_GA)}")
    a("v_mov_b32 v12, v13")
    for dt in range(8):
        c = ACC + 16 * dt
        for p in range(8): a(f"v_pk_mul_f32 {vr(c+2*p,2)}, {vr(c+2*p,2)}, v[12:13]")
        for x in pack_ops(c, c, 16): a(x)
        for u in range(2):
            a(f"buffer_store_dwordx4 {vr(c+4*u,4)}, v2, s[12:15], s23 offen offset:{(dt%2)*2048+u*1024} sc1")
        if dt % 2 == 1 and dt < 7: a("s_add_u32 s23, s23, 4096")
    a("s_branch L_p2_done")
    a("L_at_help:")
    h_setup()
    a("v_lshrrev_b32 v6, 3, v1\nv_lshlrev_b32 v6, 11, v6\nv_and_b32 v7, 7, v1\nv_lshl_add_u32 v6, v7, 7, v6")
    a(f"s_mov_b32 s25, {hx(F_P1 + 8*128)}")
    poll(6, 25, 8, (0, 8*2048))
    a(f"s_lshl_b32 s25, s19, 11\ns_add_u32 s25, s25, {hx(F_P1 + 7*128)}\nv_mov_b32 v10, 0")
    poll(10, 25, 8)
    a("s_barrier")
    a("v_and_b32 v4, 31, v1\nv_min_u32 v4, 16, v4\nv_lshrrev_b32 v5, 5, v1\nv_lshlrev_b32 v5, 5, v5\nv_lshl_add_u32 v4, v4, 6, v5")
    a(f"s_mul_i32 s23, s17, {8*1088}\ns_add_u32 s23, s23, {hx(OFF_KV)}")
    for h in range(8):
        if h % 2 == 0 and h: a(f"s_add_u32 s23, s23, {2*1088}")
        a(f"buffer_load_dwordx4 {vr(16+8*h,4)}, v4, s[12:15], s23 offen offset:{(h%2)*1088} sc1")
        a(f"buffer_load_dwordx4 {vr(20+8*h,4)}, v4, s[12:15], s23 offen offset:{(h%2)*1088+16} sc1")
    a(f"s_lshl_b32 s23, s17, 13\ns_add_u32 s23, s23, {KVL}\nv_lshlrev_b32 v5, 4, v1\nv_add_u32 v5, s23, v5")
    a("s_waitcnt vmcnt(0)")
    for h in range(8):
        for x in pack_ops(16+8*h, 16+8*h, 8): a(x)
        a(f"ds_write_b128 v5, {vr(16+8*h,4)} offset:{h*1024}")
    a("s_waitcnt lgkmcnt(0)\ns_barrier")
    R = AT_RING
    helper({0: [("s",8,R[0])], 1: [("s",9,R[1]),("s",10,R[2])], 2: [("s",11,R[3]),("s",12,R[4])], 3: [("s",13,R[5]),("s",14,R[6])],
            4: [("s",15,R[7]),("p",0)], 5: [("p",1),("p",2)], 6: [("p",3),("p",4)]},
           {3: [("s",8),("s",9)], 4: [("s",10),("s",11)], 5: [("s",12),("s",13)], 6: [("s",14),("s",15)]}, {})
    a("s_cmp_lg_u32 s19, 0\ns_cbranch_scc1 L_at_nb\ns_cmp_lg_u32 s30, 1\ns_cbranch_scc1 L_at_nb\ns_cmp_lg_u32 s16, 4\ns_cbranch_scc1 L_at_nb")
    a(f"s_mov_b32 s25, {hx(F_P1)}")
    poll(6, 25, 8, (0, 8*2048))
    a(f"s_mov_b32 s25, {hx(OFF_EPOCH)}")
    set_flag(25)
    a("L_at_nb:")
    a("s_barrier")
    h_piece(5); h_piece(6)

    a("L_p2_done:")
    a.stamp(13)
    a("s_lshl_b32 s21, s19, 2\ns_lshl_b32 s23, s30, 1\ns_add_u32 s21, s21, s23\ns_add_u32 s21, s21, s18")
    a("v_lshlrev_b32 v2, 4, v1")
    srd(a, 8, P_OUT, 2048*512*2)
    U = 128; ACC = 64; WF = 32; AW = 8
    a("v_lshrrev_b32 v12, 5, v1\nv_bfe_u32 v13, v1, 2, 2\nv_lshl_add_u32 v14, v12, 3, v13")
    a("v_bfe_u32 v15, v1, 4, 1\nv_lshlrev_b32 v15, 2, v15\nv_and_b32 v7, 1, v1\nv_lshl_add_u32 v15, v7, 1, v15\nv_bfe_u32 v7, v1, 1, 1\nv_add_u32 v15, v15, v7")
    a(f"v_bfe_u32 v7, v1, 3, 1\nv_lshlrev_b32 v7, 6, v7\nv_lshl_add_u32 v7, v15, 3, v7\nv_lshl_add_u32 v{AW}, v14, 7, v7")
    a(f"s_lshl_b32 s23, s17, 12\ns_add_u32 s23, s23, {PIECE_UNIT[0]*UNIT}\nv_add_u32 v{AW}, s23, v{AW}\nv_xor_b32 v{AW+1}, 64, v{AW}")
    a("v_and_b32 v3, 15, v1\nv_and_b32 v10, 7, v1\ns_lshr_b32 s23, s31, 2\ns_lshl_b32 s23, s23, 3\ns_add_u32 s23, s23, 7\nv_mov_b32 v11, s23")
    a("v_cmp_eq_u32 vcc, 7, v10\nv_cndmask_b32 v3, v3, v11, vcc\nv_lshlrev_b32 v3, 7, v3")
    a(f"s_lshl_b32 s34, s19, 11\ns_add_u32 s34, s34, {hx(F_P2)}")
    a(f"s_mul_i32 s25, s21, 56\ns_lshl_b32 s23, s17, 1\ns_add_u32 s25, s25, s23\ns_lshl_b32 s25, s25, 10\ns_add_u32 s25, s25, {hx(OFF_U0)}")
    a("s_waitcnt vmcnt(0)\ns_barrier")
    if Asm.STAMPS:
        a.stamp(14); a.stamp_flush(1, wait=False); a("s_mov_b64 exec, -1"); a.stamp_init()
    a("s_cmp_lg_u32 s16, 0\ns_cbranch_scc1 L_p3_nf")
    a("s_lshl_b32 s23, s30, 3\ns_add_u32 s23, s23, s20\ns_lshl_b32 s23, s23, 7\ns_add_u32 s23, s23, s34")
    set_flag(23)
    a("L_p3_nf:")
    curp = [0]
    def wread(k):
        p, e = divmod(k, 2); w = WF + 8 * (k % 2)
        if p != curp[0]:
            d = (PIECE_UNIT[p] - PIECE_UNIT[curp[0]]) * UNIT; curp[0] = p
            a(f"v_add_u32 v{AW}, {d}, v{AW}\nv_add_u32 v{AW+1}, {d}, v{AW+1}")
        for dt in range(2):
            a(f"ds_read_b64_tr_b16 {vr(w+4*dt,2)}, v{AW+dt} offset:{e*2048}")
            a(f"ds_read_b64_tr_b16 {vr(w+4*dt+2,2)}, v{AW+dt} offset:{e*2048+512}")
    wread(0)
    a("v_lshrrev_b32 v4, 3, v1\nv_and_b32 v5, 7, v1\ns_lshl_b32 s23, s17, 3\nv_add_u32 v4, s23, v4")
    a("v_lshrrev_b32 v6, 1, v5\nv_lshlrev_b32 v6, 10, v6\nv_and_b32 v7, 1, v5\nv_lshl_add_u32 v6, v7, 9, v6\nv_lshl_add_u32 v6, v4, 4, v6")
    poll(3, 34, 7)
    a.stamp(1)
    for p in range(7):
        a(f"s_add_u32 s23, s31, {p}\ns_cmp_ge_u32 s23, 7\ns_cselect_b32 s24, 7, 0\ns_sub_u32 s23, s23, s24\ns_lshl_b32 s23, s23, 13\ns_add_u32 s23, s23, s25\ns_add_u32 s24, s23, {hx(OFF_U1-OFF_U0)}")
        for e in range(2):
            k = 2*p + e
            a(f"buffer_load_dwordx4 {vr(U+8*k,4)}, v2, s[12:15], s23 offen offset:{e*1024} sc1")
            a(f"buffer_load_dwordx4 {vr(U+8*k+4,4)}, v2, s[12:15], s24 offen offset:{e*1024} sc1")
    a(f"s_lshl_b32 s23, s21, 5\ns_lshl_b32 s24, s31, 2\ns_add_u32 s23, s23, s24\ns_lshl_b32 s23, s23, 10\ns_add_u32 s23, s23, {hx(OFF_GA)}")
    a("buffer_load_dwordx4 v[20:23], v6, s[12:15], s23 offen sc1")
    a(f"v_lshlrev_b32 v6, 2, v4\ns_lshl_b32 s23, s21, 7\ns_add_u32 s23, s23, {hx(OFF_GATE)}")
    a("buffer_load_dword v24, v6, s[12:15], s23 offen sc1")
    a.stamp(2)
    for k in range(14):
        if k < 13:
            wread(k + 1); a(f"s_waitcnt vmcnt({2*(13-k)+2}) lgkmcnt(4)")
        else:
            a("s_waitcnt vmcnt(2) lgkmcnt(0)")
        w = WF + 8 * (k % 2)
        for uu in range(2):
            for dt in range(2):
                c = "0" if (k == 0 and uu == 0) else vr(ACC+16*dt, 16)
                a(f"v_mfma_f32_32x32x16_bf16 {vr(ACC+16*dt,16)}, {vr(w+4*dt,4)}, {vr(U+8*k+4*uu,4)}, {c}")
    a.stamp(3)
    a("v_and_b32 v12, 31, v1\nv_lshrrev_b32 v13, 5, v1\nv_lshlrev_b32 v13, 1, v13\nv_and_b32 v14, 7, v1\nv_xor_b32 v13, v13, v14\nv_lshlrev_b32 v13, 4, v13\nv_lshl_add_u32 v12, v12, 8, v13")
    a("s_lshl_b32 s23, s16, 13\nv_add_u32 v12, s23, v12")
    a("v_xor_b32 v13, 16, v12\nv_xor_b32 v14, 64, v12\nv_xor_b32 v15, 0x50, v12")
    a("s_barrier")
    for dt in range(2):
        for u in range(2):
            for q in range(2):
                a(f"ds_write_b128 v{12+2*u+q}, {vr(ACC+16*dt+8*u+4*q,4)} offset:{dt*128}")
    a("v_lshlrev_b32 v13, 1, v5\nv_and_b32 v14, 7, v4\nv_xor_b32 v13, v13, v14\nv_lshlrev_b32 v13, 4, v13\nv_lshl_add_u32 v12, v4, 8, v13")
    a("s_lshl_b32 s23, s18, 15\nv_add_u32 v12, s23, v12\nv_xor_b32 v13, 16, v12")
    a("s_waitcnt lgkmcnt(0)\ns_barrier")
    for k in range(4):
        a(f"ds_read_b128 {vr(32+8*k,4)}, v12 offset:{k*8192}\nds_read_b128 {vr(36+8*k,4)}, v13 offset:{k*8192}")
    a("s_waitcnt vmcnt(0)")
    a("v_sub_f32 v24, 1.0, v24\nv_mov_b32 v25, v24")
    for p in range(4):
        a(f"v_lshlrev_b32 v{64+2*p}, 16, v{20+p}\nv_and_b32 v{65+2*p}, 0xffff0000, v{20+p}")
    a("s_lshl_b32 s23, s21, 15\ns_lshl_b32 s24, s31, 7\ns_add_u32 s23, s23, s24")
    a("v_lshlrev_b32 v6, 10, v4\nv_lshl_add_u32 v6, v5, 4, v6")
    a("s_waitcnt lgkmcnt(0)")
    for p in range(4):
        b = 32 + 2*p
        a(f"v_pk_add_f32 {vr(b,2)}, {vr(b,2)}, {vr(b+8,2)}\nv_pk_add_f32 {vr(b+16,2)}, {vr(b+16,2)}, {vr(b+24,2)}")
    for p in range(4):
        b = 32 + 2*p
        a(f"v_pk_add_f32 {vr(b,2)}, {vr(b,2)}, {vr(b+16,2)}")
    for p in range(4):
        b = 32 + 2*p
        a(f"v_pk_fma_f32 {vr(b,2)}, {vr(b,2)}, v[24:25], {vr(64+2*p,2)}")
    for x in pack_ops(32, 32, 8): a(x)
    a("buffer_store_dwordx4 v[32:35], v6, s[8:11], s23 offen sc1")
    a.stamp(14)
    a.stamp_flush(2)
    a("L_end:\ns_endpgm\nL_codeend:")
    return a

HDR = """.amdgcn_target "amdgcn-amd-amdhsa--gfx950"
.text
"""
KNAME = "gated_mix__linear_attn_block__mixer_gmlp__prompt_kernel"
def build(path, cfg, stamps=None):
    Asm.STAMPS = stamps is not None
    Asm.STAMP_OP = "s_memtime" if stamps == "cy" else "s_memrealtime"
    a = gen(KNAME, cfg)
    src = "; @launch grid=(256,1,1) block=(512,1,1) lds=163840\n" + HDR + a.text() + '.section .rodata,"a"\n' + kd(KNAME)
    open(path, "w").write(src)

if __name__ == "__main__":
    cfg = {}
    for kv in sys.argv[1:]:
        k, v = kv.split("="); cfg[k] = int(v)
    build("m.s", cfg); build("m_st.s", cfg, "st"); build("m_cy.s", cfg, "cy")
```

```python
import struct, math, sys
from asmlib import Asm, kd
from gen2 import f2u, hx, vr, srd, gelu_ops, phi_ops, pack_ops, weave, HDR, KNAME

OFF_Z2N = 0x0
OFF_Z1 = 0x400000
OFF_PQ = 0x800000
OFF_U0 = 0xA00000
OFF_U1 = 0xE00000
OFF_O = 0x1200000
OFF_KV = 0x1600000
OFF_GATE = 0x1610000
OFF_EX = 0x1620000
OFF_FLAG = 0x1680000
F_P1 = OFF_FLAG
F_Z2 = OFF_FLAG + 0x8000
F_ZERO = OFF_FLAG + 0x18000
F_P2 = OFF_FLAG + 0x20000
OFF_EPOCH = 0x16F0000
WS_BYTES = 0x1800000
TAGINC = 0x9E3779B9
SPIN_MAX = 0x40000
GK = 2.0 * math.sqrt(2.0 / math.pi) * math.log2(math.e)
LOG2E = math.log2(math.e)
P_X, P_WQKV, P_WO, P_WIN, P_WSP, P_BSP, P_WOUT, P_GW, P_OUT, P_WS = 36, 38, 40, 44, 46, 48, 50, 52, 54, 58
UNIT = 16384
WO_UNIT = [6, 7, 8, 9]
PIECE_UNIT = [0, 1, 2, 3, 4, 5, 6]
SCR = 8 * UNIT

def gen(name, cfg):
    a = Asm()
    lbl = [0]
    LA = cfg.get("LA", 6)
    def set_flag(sreg):
        a(f"v_mov_b32 v4, s28\nv_mov_b32 v5, 0\ns_mov_b64 exec, 1")
        a(f"buffer_store_dword v4, v5, s[12:15], s{sreg} offen sc1\ns_mov_b64 exec, -1")
    def wave_flag(sreg):
        a(f"s_lshl_b32 s35, s16, 2\ns_add_u32 s35, s35, s{sreg}")
        set_flag(35)
    def poll(vaddr, sreg, vdst, offsets=(0,), sleep=0):
        lbl[0] += 1; L = f"L_poll{lbl[0]}"
        a(f"{L}:")
        for k, off in enumerate(offsets):
            if off: a(f"s_add_u32 s35, s{sreg}, {off}")
            a(f"buffer_load_dword v{vdst+k}, v{vaddr}, s[12:15], s{35 if off else sreg} offen sc1")
        a("s_add_u32 s33, s33, 1")
        a("s_waitcnt vmcnt(0)")
        a(f"v_cmp_ne_u32 vcc, s28, v{vdst}")
        for k in range(1, len(offsets)):
            a(f"v_cmp_ne_u32 s[60:61], s28, v{vdst+k}\ns_nop 1\ns_or_b64 vcc, vcc, s[60:61]")
        a(f"s_cmp_gt_u32 s33, {SPIN_MAX}\ns_cbranch_scc1 {L}_d")
        if sleep: a(f"s_cbranch_vccz {L}_d\ns_sleep {sleep}\ns_branch {L}")
        else: a(f"s_cbranch_vccnz {L}")
        a(f"{L}_d:")
    def frag_addr(dst, t0, t1):
        a(f"v_and_b32 v{t0}, 31, v1\nv_lshrrev_b32 v{t1}, 5, v1\nv_bfe_u32 v{dst}, v1, 1, 3\nv_xor_b32 v{dst}, v{dst}, v{t1}\nv_lshlrev_b32 v{dst}, 4, v{dst}\nv_lshl_add_u32 v{dst}, v{t0}, 7, v{dst}")
    def tr_addr(dst, t0, t1):
        a(f"v_lshrrev_b32 v{t0}, 5, v1\nv_bfe_u32 v{t1}, v1, 2, 2\nv_lshl_add_u32 v{dst}, v{t0}, 3, v{t1}\nv_lshlrev_b32 v{dst}, 7, v{dst}")
        a(f"v_bfe_u32 v{t0}, v1, 3, 1\nv_lshl_add_u32 v{dst}, v{t0}, 6, v{dst}\nv_bfe_u32 v{t0}, v1, 4, 1\nv_lshl_add_u32 v{dst}, v{t0}, 5, v{dst}")
        a(f"v_and_b32 v{t0}, 1, v1\nv_lshl_add_u32 v{dst}, v{t0}, 4, v{dst}\nv_bfe_u32 v{t0}, v1, 1, 1\nv_lshl_add_u32 v{dst}, v{t0}, 3, v{dst}")
    def rowimg_voff(dst, tid, shift_or_sreg, t0, t1, xswz):
        a(f"v_lshrrev_b32 v{t0}, 3, v{tid}")
        if isinstance(shift_or_sreg, int): a(f"v_lshlrev_b32 v{dst}, {shift_or_sreg}, v{t0}")
        else: a(f"v_mul_lo_u32 v{dst}, v{t0}, {shift_or_sreg}")
        if xswz: a(f"v_lshrrev_b32 v{t0}, 4, v{tid}\nv_xor_b32 v{t0}, v{t0}, v{tid}\nv_and_b32 v{t0}, 7, v{t0}")
        else: a(f"v_bfe_u32 v{t0}, v{tid}, 4, 1\nv_lshlrev_b32 v{t0}, 2, v{t0}\nv_and_b32 v{t1}, 7, v{tid}\nv_xor_b32 v{t0}, v{t0}, v{t1}")
        a(f"v_lshl_add_u32 v{dst}, v{t0}, 4, v{dst}")

    a(f".globl {name}\n.p2align 8\n.type {name},@function\n{name}:")
    a(f"s_cmp_ge_u32 s2, 256\ns_cbranch_scc1 L_end")
    a("s_load_dwordx16 s[36:51], s[0:1], 0")
    a("s_load_dwordx8 s[52:59], s[0:1], 64")
    a.stamp_init()
    a("v_and_b32 v1, 63, v0\nv_lshrrev_b32 v2, 6, v0")
    a("v_readfirstlane_b32 s16, v2")
    a("s_lshr_b32 s29, s2, 3\ns_and_b32 s30, s2, 1")
    a("s_bfe_u32 s19, s2, 0x20001\ns_lshl_b32 s19, s19, 2\ns_and_b32 s23, s29, 3\ns_add_u32 s19, s19, s23")
    a("s_lshr_b32 s31, s29, 2")
    a("s_lshl_b32 s21, s23, 1\ns_add_u32 s21, s21, s31\ns_and_b32 s21, s21, 7")
    a("s_and_b32 s20, s31, 3\ns_lshl_b32 s23, s30, 2\ns_add_u32 s20, s20, s23")
    a("s_and_b32 s17, s16, 3\ns_lshr_b32 s18, s16, 2\ns_lshl_b32 s27, s17, 10\ns_mov_b32 s33, 0")
    a("s_mov_b32 s7, 0x20000\ns_mov_b32 s11, 0x20000\ns_mov_b32 s99, 0x20000")
    a("s_lshl_b32 s22, s30, 3\ns_add_u32 s22, s22, s31")
    a("s_cmp_eq_u32 s22, 11\ns_cbranch_scc1 L_misc")
    a("s_cmp_lt_u32 s16, 4\ns_cbranch_scc1 L_p1_comp")
    a("v_and_b32 v6, 255, v0")
    rowimg_voff(2, 6, 10, 4, 5, True)
    a("s_movk_i32 s23, 3584"); rowimg_voff(3, 6, "s23", 4, 5, False)
    a("s_movk_i32 s23, 3072"); rowimg_voff(7, 6, "s23", 4, 5, False)
    a("s_lshl_b32 s24, s19, 17\ns_lshl_b32 s25, s20, 8\ns_lshl_b32 s26, s20, 7")
    a("s_waitcnt lgkmcnt(0)")
    a(f"s_mov_b32 s4, s{P_X}\ns_mov_b32 s5, s{P_X+1}\ns_mov_b32 s6, {hx(2048*512*2)}")
    a(f"s_mov_b32 s8, s{P_WIN}\ns_mov_b32 s9, s{P_WIN+1}\ns_mov_b32 s10, {hx(512*1792*2)}")
    a(f"s_mov_b32 s96, s{P_WQKV}\ns_mov_b32 s97, s{P_WQKV+1}\ns_mov_b32 s98, {hx(512*1536*2)}")
    def h_kslice(k): a(f"s_add_u32 s23, s21, {k}\ns_and_b32 s23, s23, 7")
    def h_x(base):
        a("s_lshl_b32 s34, s23, 7\ns_add_u32 s34, s34, s24")
        for m in range(4):
            a(f"s_add_u32 m0, s27, {base + m*4096}\nbuffer_load_dwordx4 v2, s[4:7], s34 offen lds")
            if m < 3: a("s_add_u32 s34, s34, 32768")
        return 4
    def h_w(base, win, colreg, coladd):
        st = 3584 if win else 3072
        a(f"s_mul_i32 s34, s23, {64*st}\ns_add_u32 s34, s34, s{colreg}")
        if coladd: a(f"s_add_u32 s34, s34, {coladd}")
        for m in range(2):
            a(f"s_add_u32 m0, s27, {base + m*4096}\nbuffer_load_dwordx4 v{3 if win else 7}, s[{'8:11' if win else '96:99'}], s34 offen lds")
            if m < 1: a(f"s_add_u32 s34, s34, {32*st}")
        return 2
    def ws_setup():
        srd(a, 12, P_WS, WS_BYTES)
        a(f"s_add_u32 s60, s{P_WS}, {hx(OFF_EPOCH)}\ns_addc_u32 s61, s{P_WS+1}, 0\ns_load_dword s28, s[60:61], 0")
    def tag_ready(): a(f"s_waitcnt lgkmcnt(0)\ns_add_u32 s28, s28, {hx(TAGINC)}")
    class Stream:
        def __init__(self): self.order = []
        def add(self, tag, n): self.order.append((tag, n))
        def wait(self, tag):
            idx = [i for i, (t, n) in enumerate(self.order) if t == tag]
            if idx: a(f"s_waitcnt vmcnt({min(63, sum(n for t, n in self.order[max(idx)+1:]))})")
        def clear(self): self.order = []
    def gate_poll():
        a(f"s_lshl_b32 s23, s19, 11\ns_add_u32 s23, s23, {hx(F_P1 + 7*128)}\nv_mov_b32 v8, 0")
        poll(8, 23, 9)
    def p2_role(): a("s_lshl_b32 s23, s30, 2\ns_xor_b32 s20, s31, s23")
    def h2_setup():
        a("v_and_b32 v6, 255, v0")
        rowimg_voff(2, 6, 12, 4, 5, True)
        rowimg_voff(3, 6, 10, 4, 5, False)
        a("s_lshl_b32 s24, s19, 19\ns_lshl_b32 s23, s30, 11\ns_add_u32 s24, s24, s23\ns_and_b32 s21, s19, 3\ns_lshl_b32 s21, s21, 2")
        a(f"s_mov_b32 s4, s{P_WSP}\ns_mov_b32 s5, s{P_WSP+1}\ns_mov_b32 s6, {hx(2048*2048*2)}")
        a(f"s_mov_b32 s8, s{P_WOUT}\ns_mov_b32 s9, s{P_WOUT+1}\ns_mov_b32 s10, {hx(896*512*2)}")
        a(f"s_mov_b32 s96, s{P_WO}\ns_mov_b32 s97, s{P_WO+1}\ns_mov_b32 s98, {hx(512*512*2)}")
    def h_slice(sl):
        a(f"s_add_u32 s23, s21, {sl}\ns_and_b32 s23, s23, 15\ns_lshl_b32 s34, s23, 7\ns_add_u32 s34, s34, s24")
        for m in range(4):
            a(f"s_add_u32 m0, s27, {(sl % 10)*UNIT + m*4096}\nbuffer_load_dwordx4 v2, s[4:7], s34 offen lds")
            if m < 3: a(f"s_add_u32 s34, s34, {32*4096}")
    def h_piece(p):
        a(f"s_add_u32 s23, s31, {p}\ns_cmp_ge_u32 s23, 7\ns_cselect_b32 s34, 7, 0\ns_sub_u32 s23, s23, s34\ns_lshl_b32 s34, s23, 17\ns_lshl_b32 s23, s31, 7\ns_add_u32 s34, s34, s23")
        for m in range(4):
            a(f"s_add_u32 m0, s27, {PIECE_UNIT[p]*UNIT + m*4096}\nbuffer_load_dwordx4 v3, s[8:11], s34 offen lds")
            if m < 3: a(f"s_add_u32 s34, s34, {32*1024}")
    def h_wo(p):
        a(f"s_lshl_b32 s34, s31, 7" + (f"\ns_add_u32 s34, s34, {p << 17}" if p else ""))
        for m in range(4):
            a(f"s_add_u32 m0, s27, {WO_UNIT[p]*UNIT + m*4096}\nbuffer_load_dwordx4 v3, s[96:99], s34 offen lds")
            if m < 3: a(f"s_add_u32 s34, s34, {32*1024}")
    THR = cfg.get("pre_thr", 4)
    def h_preload():
        for sl in range(8):
            h_slice(sl)
            if THR < 60: a(f"s_waitcnt vmcnt({THR})")

    a("s_cmp_ge_u32 s31, 4\ns_cbranch_scc1 L_hq")
    S = Stream()
    def zs(n):
        base = (n % 5) * 2 * UNIT; c = 0
        h_kslice(n if n < 8 else n - 5)
        if n < 8: c += h_x(base) + h_w(base + UNIT, True, 25, 1792) + h_w(base + UNIT + 8192, True, 25, 1792 + 128)
        else: c += h_w(base + UNIT + (8192 if n >= 13 else 0), True, 25, 0)
        S.add(n, c)
    zs(0); zs(1); ws_setup(); a.stamp(1)
    after = {0: [2, 3], 1: [4], 2: [5], 3: [6], 4: [7], 5: [8, 13], 6: [9, 14], 7: [10, 15]}
    for n in range(8):
        S.wait(n); a("s_barrier")
        for k in after.get(n, []): zs(k)
    a("s_barrier")
    zs(11); zs(12); tag_ready(); gate_poll()
    a("s_barrier")
    p2_role(); h2_setup()
    a("s_barrier")
    a("s_barrier")
    NG = cfg.get("ng", 3)
    for sl in range(NG): h_slice(sl)
    a("s_barrier")
    for sl in range(NG, 8): h_slice(sl)
    a("s_branch L_sp_help")
    a("L_hq:")
    S = Stream()
    def qs(n):
        base = (n % 3) * 3 * UNIT
        h_kslice(n)
        c = h_x(base) + h_w(base + UNIT, False, 26, 1024) + h_w(base + UNIT + 8192, False, 26, 2048) + h_w(base + 2*UNIT, False, 26, 0) + h_w(base + 2*UNIT + 8192, True, 25, 128)
        S.add(n, c)
    qs(0); qs(1); ws_setup(); a.stamp(1)
    TCH = cfg.get("wsp_touch", 1)
    if TCH:
        a("v_bfe_u32 v8, v1, 4, 1\nv_lshlrev_b32 v8, 12, v8\nv_and_b32 v9, 15, v1\nv_lshl_add_u32 v12, v9, 7, v8")
        a("s_lshl_b32 s62, s19, 2\ns_and_b32 s34, s31, 3\ns_add_u32 s62, s62, s34\ns_lshl_b32 s62, s62, 17\ns_lshl_b32 s34, s30, 11\ns_add_u32 s62, s62, s34\ns_lshl_b32 s34, s17, 13\ns_add_u32 s62, s62, s34")
        a(f"v_add_u32 v12, s62, v12")
    def touch(k):
        a(f"s_mov_b64 exec, 0xffffffff\nglobal_load_dword v13, v12, s[{P_WSP}:{P_WSP+1}]\ns_mov_b64 exec, -1\nv_add_u32 v12, 32768, v12")
        S.add(("t", k), 1)
    for n in range(8):
        S.wait(n); a("s_barrier")
        if n == 0: qs(2)
        if n >= 1:
            if n == 7: tag_ready(); gate_poll()
            a("s_barrier")
            if n + 2 < 8: qs(n + 2)
            if TCH and TCH <= n < TCH + 4: touch(n)
    a(f"s_lshl_b32 s25, s20, 8\ns_add_u32 s25, s25, {hx(F_ZERO)}\nv_and_b32 v8, 1, v1\nv_lshlrev_b32 v8, 7, v8")
    poll(8, 25, 9)
    a("s_barrier")
    a(f"s_mul_i32 s25, s20, 4352\ns_add_u32 s25, s25, {hx(OFF_KV)}")
    a(f"v_and_b32 v6, 255, v0\nv_lshlrev_b32 v8, 2, v6\nv_add_u32 v9, {SCR}, v8")
    a("s_barrier")
    for k in range(5):
        for rg in range(2): a(f"ds_read_b32 v{16+2*k+rg}, v9 offset:{rg*4352 + k*1024}")
    a(f"s_lshl_b32 s26, s19, 4\ns_add_u32 s26, s26, s20\ns_lshl_b32 s26, s26, 7\ns_add_u32 s26, s26, {hx(F_P1 + 8*128)}")
    a("s_waitcnt lgkmcnt(0)")
    for k in range(5): a(f"v_add_f32 v{16+2*k}, v{16+2*k}, v{17+2*k}")
    for k in range(4): a(f"buffer_atomic_add_f32 v{16+2*k}, v8, s[12:15], s25 offen offset:{k*1024}")
    a("s_cmp_lg_u32 s16, 4\ns_cbranch_scc1 L_hq2\ns_add_u32 s25, s25, 4096")
    a("buffer_atomic_add_f32 v24, v8, s[12:15], s25 offen")
    a("L_hq2:")
    p2_role()
    a("s_cmp_eq_u32 s20, 7\ns_cbranch_scc1 L_o_entry")
    h2_setup()
    for sl in range(4): h_slice(sl)
    a("s_waitcnt vmcnt(16)")
    wave_flag(26)
    for sl in range(4, 8): h_slice(sl)
    a("s_branch L_sp_help")

    a("L_p1_comp:")
    if cfg.get("codepf", 1):
        a("s_cmp_lg_u32 s16, 0\ns_cbranch_scc1 L_nopf")
        a("s_getpc_b64 s[60:61]\nL_pc0:")
        a(f"s_sub_u32 s60, s60, L_pc0-{name}\ns_subb_u32 s61, s61, 0")
        a("v_and_b32 v3, 15, v0\nv_lshlrev_b32 v3, 12, v3\ns_lshl_b32 s23, s29, 7\nv_add_u32 v3, s23, v3")
        a(f"v_cmp_gt_u32 vcc, L_codeend-{name}, v3\ns_and_b64 exec, vcc, 0xffff")
        a("global_load_dword v6, v3, s[60:61]")
        a("s_mov_b64 exec, -1")
        a("L_nopf:")
    AX = 8; AW = 12; ATR = 14; XF = 24; NX = 4; WF = 40; NWF = LA + 2; TMP = 72; T = TMP; ACC = 128
    C1, C0, CL, CE = 16, 18, 20, 22
    frag_addr(AX, 4, 5)
    a(f"s_lshl_b32 s23, s17, 12\nv_add_u32 v{AX}, s23, v{AX}")
    for k in range(1, 4): a(f"v_xor_b32 v{AX+k}, {32*k}, v{AX}")
    tr_addr(ATR, 4, 5)
    a(f"v_add_u32 v{AW}, {UNIT}, v{ATR}\nv_xor_b32 v{AW+1}, 64, v{AW}")
    a("v_lshlrev_b32 v2, 4, v1")
    for r_, val in ((C1, -GK*0.044715), (C0, -GK), (CL, LOG2E), (CE, 1e-6)):
        a(f"v_mov_b32 v{r_}, {hx(f2u(val))}\nv_mov_b32 v{r_+1}, {hx(f2u(val))}")
    a("s_waitcnt lgkmcnt(0)")
    ws_setup(); tag_ready()
    curx = [0, 0, 0, 0]; curw = [0, 0]
    XKEEP = [96 + 4*i for i in range(8)] + [224 + 4*i for i in range(4)]
    def gemm(RT, CT, acc, orientB, slot_base, rbar, vbar, stamps={}, keep=False, xreg=None, woff=None, hooks={}):
        NF = 32 * CT
        la = LA if RT == 1 else max(3, LA // 2 + 1)
        seq = []; seen_v = set()
        def need_v(it):
            if it not in seen_v:
                seen_v.add(it)
                if vbar(it): a("s_barrier")
                if it in stamps: a.stamp(stamps[it])
        def xr(g, rt):
            if xreg and xreg(g) is not None: return xreg(g)
            if keep and g < 12: return XKEEP[g]
            return XF + 4 * ((g * RT + rt) % NX)
        def rx(g):
            it, ks = divmod(g, 4); need_v(it)
            if xreg and xreg(g) is not None: return
            d = slot_base(it) - curx[ks]
            if d: a(f"v_add_u32 v{AX+ks}, {d}, v{AX+ks}"); curx[ks] += d
            for rt in range(RT): a(f"ds_read_b128 {vr(xr(g, rt),4)}, v{AX+ks} offset:{rt*4096}")
            seq.append((("x", g), RT))
        def rw(f):
            g, c = divmod(f, CT); it, ks = divmod(g, 4); need_v(it)
            par = (c & 1) if RT == 1 else 0; grp = (c >> 1) if RT == 1 else c
            d = slot_base(it) - curw[par]
            if d: a(f"v_add_u32 v{AW+par}, {d}, v{AW+par}"); curw[par] += d
            off = grp * 8192 + ks * 2048 + (woff(it) if woff else 0); w = WF + 4 * (f % NWF)
            a(f"ds_read_b64_tr_b16 {vr(w,2)}, v{AW+par} offset:{off}\nds_read_b64_tr_b16 {vr(w+2,2)}, v{AW+par} offset:{off+512}")
            seq.append((("w", f), 2))
        for f in range(la):
            if f % CT == 0: rx(f // CT)
            rw(f)
        for f in range(NF):
            g, c = divmod(f, CT)
            pos = max(i for i, (t, n) in enumerate(seq) if t in (("w", f), ("x", g)))
            a(f"s_waitcnt lgkmcnt({min(15, sum(n for t, n in seq[pos+1:]))})")
            f2 = f + la
            for rt in range(RT):
                x = vr(xr(g, rt), 4); w = vr(WF+4*(f%NWF), 4); d = acc + 16 * (c * RT + rt)
                A, B = (w, x) if orientB[c] else (x, w)
                a(f"v_mfma_f32_32x32x16_bf16 {vr(d,16)}, {A}, {B}, " + ("0" if g == 0 else vr(d, 16)))
                if rt == 0 and f2 < NF and f2 % CT == 0: rx(f2 // CT)
                if rt == RT - 1 and f2 < NF: rw(f2)
                if rt == 0 and rbar and f % (4 * CT) == 1 and f > 4 * CT: a("s_barrier")
            if f in hooks: hooks[f]()
    def gate_load(dst, RT=1):
        a(f"v_and_b32 v4, 31, v1\nv_lshlrev_b32 v4, 2, v4\ns_lshl_b32 s23, s19, 9")
        if RT == 1: a("s_lshl_b32 s22, s17, 7")
        else: a("s_and_b32 s22, s17, 1\ns_lshl_b32 s22, s22, 8")
        a(f"s_add_u32 s23, s23, s22\ns_add_u32 s23, s23, {hx(OFF_GATE)}")
        for rt in range(RT): a(f"buffer_load_dword v{dst+2*rt}, v4, s[12:15], s23 offen offset:{rt*128} sc1")
    def z1_out(acc, G, RT):
        for rt in range(max(RT, 1)): a(f"v_sub_f32 v{G+2*rt}, 1.0, v{G+2*rt}\nv_mov_b32 v{G+2*rt+1}, v{G+2*rt}")
        for x in gelu_ops([acc + 2*i for i in range(16)], TMP, C1, C0): a(x)
        for i in range(16): a(f"v_pk_mul_f32 {vr(acc+2*i,2)}, {vr(acc+2*i,2)}, {vr(G + (2*(i//8) if RT == 2 else 0),2)}")
        for x in pack_ops(acc, acc, 32): a(x)
    def fm_store(acc, RT, nks, colmul, off):
        if RT == 1: a("s_lshl_b32 s25, s19, 2\ns_add_u32 s25, s25, s17")
        else: a("s_lshl_b32 s25, s19, 1\ns_and_b32 s23, s17, 1\ns_add_u32 s25, s25, s23\ns_lshl_b32 s25, s25, 1")
        a(f"s_mul_i32 s25, s25, {nks}\ns_mul_i32 s23, s20, {colmul}\ns_add_u32 s25, s25, s23")
        if RT == 2: a("s_and_b32 s23, s17, 2\ns_add_u32 s25, s25, s23")
        a(f"s_lshl_b32 s25, s25, 10\ns_add_u32 s25, s25, {hx(off)}")
        for u in range(4):
            if RT == 2 and u == 2: a(f"s_add_u32 s25, s25, {nks*1024}")
            a(f"buffer_store_dwordx4 {vr(acc+4*u,4)}, v2, s[12:15], s25 offen offset:{(u if RT == 1 else u % 2)*1024} sc1")
    def z1_store(acc, hi, RT): fm_store(acc, RT, 56, 8, OFF_Z1 + hi * 4096)
    GR = 68
    GR = 240
    a.stamp(2)
    a("s_cmp_ge_u32 s31, 4\ns_cbranch_scc1 L_cq")
    gemm(1, 4, ACC, [True]*4, lambda it: (it % 5) * 2 * UNIT, False, lambda it: True, {0: 3, 2: 4, 5: 5}, keep=True)
    a("s_barrier")
    a.stamp(6)
    for x in gelu_ops([ACC + 2*i for i in range(32)], TMP, C1, C0): a(x)
    a(f"v_pk_add_f32 {vr(T,2)}, {vr(ACC,2)}, {vr(ACC+2,2)}\nv_pk_add_f32 {vr(T+2,2)}, {vr(ACC+4,2)}, {vr(ACC+6,2)}")
    for i in range(4, 32, 2):
        a(f"v_pk_add_f32 {vr(T,2)}, {vr(T,2)}, {vr(ACC+2*i,2)}\nv_pk_add_f32 {vr(T+2,2)}, {vr(T+2,2)}, {vr(ACC+2*i+2,2)}")
    a(f"v_pk_add_f32 {vr(T,2)}, {vr(T,2)}, {vr(T+2,2)}\nv_add_f32 v{T}, v{T}, v{T+1}\nv_mov_b32 v{T+1}, v{T}")
    a(f"v_permlane32_swap_b32 v{T}, v{T+1}")
    a(f"v_add_f32 v{T}, v{T}, v{T+1}\nv_mul_f32 v{T}, {hx(f2u(1/128.))}, v{T}\nv_mov_b32 v{T+1}, v{T}")
    for i in range(32):
        d = T + 8 + 2 * (i % 4); s = T + 4 + 2 * (i % 2)
        a(f"v_pk_add_f32 {vr(d,2)}, {vr(ACC+2*i,2)}, {vr(T,2)} neg_lo:[0,1] neg_hi:[0,1]")
        if i < 2: a(f"v_pk_mul_f32 {vr(s,2)}, {vr(d,2)}, {vr(d,2)}")
        else: a(f"v_pk_fma_f32 {vr(s,2)}, {vr(d,2)}, {vr(d,2)}, {vr(s,2)}")
    a(f"v_pk_add_f32 {vr(T+4,2)}, {vr(T+4,2)}, {vr(T+6,2)}\nv_add_f32 v{T+1}, v{T+4}, v{T+5}\nv_mov_b32 v{T+4}, v{T+1}")
    a(f"s_lshl_b32 s23, s19, 3\ns_add_u32 s23, s23, s20\ns_lshl_b32 s23, s23, 11\ns_lshl_b32 s34, s17, 9\ns_add_u32 s35, s23, s34\ns_add_u32 s35, s35, {hx(OFF_EX)}")
    a(f"v_permlane32_swap_b32 v{T+1}, v{T+4}\nv_add_f32 v{T+1}, v{T+1}, v{T+4}")
    a(f"v_mov_b32 v{T+2}, s28\nv_not_b32 v{T+3}, v{T+2}")
    a("s_mov_b64 exec, 0xffffffff")
    a(f"buffer_store_dwordx4 {vr(T,4)}, v2, s[12:15], s35 offen sc1")
    a("s_mov_b64 exec, -1")
    a.stamp(7)
    ACC2 = ACC + 64
    PV = T + 4
    a(f"s_lshl_b32 s35, s19, 14\ns_add_u32 s35, s35, s34\ns_add_u32 s35, s35, {hx(OFF_EX)}")
    a(f"v_and_b32 v{PV+1}, 31, v1\nv_lshlrev_b32 v{PV+1}, 4, v{PV+1}\nv_lshrrev_b32 v{PV}, 5, v1\nv_lshl_add_u32 v{PV}, v{PV}, 11, v{PV+1}\nv_add_u32 v{PV+1}, 4096, v{PV+1}")
    def ex_load(i):
        a(f"buffer_load_dwordx4 {vr(T+8+4*i,4)}, v{PV + (1 if i == 3 else 0)}, s[12:15], s35 offen sc1")
        if i < 2: a("s_add_u32 s35, s35, 4096")
        if i == 3: a("s_sub_u32 s35, s35, 8192")
    PA = cfg.get("poll_at", 36)
    hooks = {PA + i: (lambda i=i: ex_load(i)) for i in range(4)}
    hooks[2] = lambda: gate_load(GR)
    gemm(1, 2, ACC2, [True]*2, lambda it: ((it + 8) % 5) * 2 * UNIT, False, lambda it: it == 0, {0: 8},
         xreg=lambda g: XKEEP[g - 20] if g >= 20 else None, woff=lambda it: 8192 if it >= 5 else 0, hooks=hooks)
    a("s_barrier")
    a.stamp(9)
    a("s_branch L_z_chk")
    a("L_z_poll:")
    for i in range(4): ex_load(i)
    a("L_z_chk:")
    a("s_add_u32 s33, s33, 1")
    a("s_waitcnt vmcnt(0)")
    a(f"v_xor_b32 v{T+6}, v{T+10}, v{T+2}\nv_xor_b32 v{T+7}, v{T+11}, v{T+3}\nv_or_b32 v{T+6}, v{T+6}, v{T+7}")
    for i in range(1, 4):
        a(f"v_xor_b32 v{T+7}, v{T+10+4*i}, v{T+2}\nv_or_b32 v{T+6}, v{T+6}, v{T+7}\nv_xor_b32 v{T+7}, v{T+11+4*i}, v{T+3}\nv_or_b32 v{T+6}, v{T+6}, v{T+7}")
    a(f"v_cmp_ne_u32 vcc, 0, v{T+6}")
    a(f"s_cmp_gt_u32 s33, {SPIN_MAX}\ns_cbranch_scc1 L_z_polled\ns_cbranch_vccnz L_z_poll")
    a("L_z_polled:")
    a.stamp(10)
    a(f"v_add_f32 v{T}, v{T+8}, v{T+12}\nv_add_f32 v{T}, v{T}, v{T+16}\nv_fma_f32 v{T}, v{T+20}, 0.5, v{T}\nv_mov_b32 v{T+1}, v{T}")
    a(f"v_permlane32_swap_b32 v{T}, v{T+1}\nv_add_f32 v{T}, v{T}, v{T+1}\nv_mul_f32 v{T}, {hx(f2u(1/7.))}, v{T}")
    a(f"v_mov_b32 v{T+7}, {hx(f2u(128.0))}")
    for i in range(4):
        a(f"v_sub_f32 v{T+8+4*i}, v{T+8+4*i}, v{T}\nv_mul_f32 v{T+8+4*i}, v{T+8+4*i}, v{T+8+4*i}\nv_fma_f32 v{T+9+4*i}, v{T+8+4*i}, v{T+7}, v{T+9+4*i}")
    a(f"v_add_f32 v{T+6}, v{T+9}, v{T+13}\nv_add_f32 v{T+6}, v{T+6}, v{T+17}\nv_fma_f32 v{T+6}, v{T+21}, 0.5, v{T+6}\nv_mov_b32 v{T+7}, v{T+6}")
    a(f"v_permlane32_swap_b32 v{T+6}, v{T+7}\nv_add_f32 v{T+6}, v{T+6}, v{T+7}")
    a(f"v_mov_b32 v{T+7}, {hx(f2u(1e-5))}\nv_mov_b32 v{T+8}, {hx(f2u(1/896.))}\nv_fma_f32 v{T+6}, v{T+6}, v{T+8}, v{T+7}\nv_rsq_f32 v{T+6}, v{T+6}")
    a(f"v_mul_f32 v{T}, v{T}, v{T+6}\nv_mov_b32 v{T+7}, v{T+6}\nv_mov_b32 v{T+1}, v{T}")
    W0 = T + 8
    a(f"v_and_b32 v{W0}, 31, v1\nv_bfe_u32 v{W0+1}, v1, 1, 1\nv_lshlrev_b32 v{W0+1}, 2, v{W0+1}\nv_bfe_u32 v{W0+2}, v1, 2, 1\nv_lshl_add_u32 v{W0+1}, v{W0+2}, 1, v{W0+1}")
    a(f"v_and_b32 v{W0+2}, 1, v1\nv_add_u32 v{W0+1}, v{W0+1}, v{W0+2}\nv_lshrrev_b32 v{W0+2}, 5, v1\nv_xor_b32 v{W0+1}, v{W0+1}, v{W0+2}")
    a(f"v_lshlrev_b32 v{W0+1}, 4, v{W0+1}\nv_lshl_add_u32 v{W0}, v{W0}, 7, v{W0+1}")
    a(f"s_lshl_b32 s23, s17, 13\ns_add_u32 s23, s23, {SCR}\nv_add_u32 v{W0}, s23, v{W0}")
    for u in range(1, 4): a(f"v_xor_b32 v{W0+u}, {32*u}, v{W0}")
    R0 = T + 12
    a(f"v_bfe_u32 v{R0}, v1, 2, 1\nv_lshlrev_b32 v{R0}, 4, v{R0}\nv_xor_b32 v{R0}, v{ATR}, v{R0}\nv_add_u32 v{R0}, s23, v{R0}")
    for u in range(1, 4): a(f"v_xor_b32 v{R0+u}, {32*u}, v{R0}")
    for ct in range(4):
        for i in range(8):
            c = ACC + 16*ct + 2*i
            a(f"v_pk_fma_f32 {vr(c,2)}, {vr(c,2)}, {vr(T+6,2)}, {vr(T,2)} neg_lo:[0,0,1] neg_hi:[0,0,1]")
        for x in pack_ops(ACC+16*ct, ACC+16*ct, 16): a(x)
        for u in range(2):
            a(f"ds_write_b128 v{W0 + 2*(ct&1) + u}, {vr(ACC+16*ct+4*u,4)} offset:{(ct>>1)*4096}")
    a(f"s_lshl_b32 s23, s20, 9\ns_lshl_b32 s35, s19, 3\ns_add_u32 s23, s23, s35\ns_lshl_b32 s35, s17, 1\ns_add_u32 s23, s23, s35\ns_lshl_b32 s23, s23, 10")
    a("s_waitcnt lgkmcnt(0)")
    for ct in range(4):
        for ks in range(2):
            d = ACC + 16*ct + 8 + 4*ks
            a(f"ds_read_b64_tr_b16 {vr(d,2)}, v{R0 + 2*(ct&1)} offset:{(ct>>1)*4096 + ks*2048}")
            a(f"ds_read_b64_tr_b16 {vr(d+2,2)}, v{R0 + 2*(ct&1) + 1} offset:{(ct>>1)*4096 + ks*2048 + 512}")
    for ct in range(4):
        a(f"s_waitcnt lgkmcnt({12 - 4*ct})")
        for ks in range(2):
            a(f"buffer_store_dwordx4 {vr(ACC+16*ct+8+4*ks,4)}, v2, s[12:15], s23 offen offset:{ks*1024} sc1")
        if ct < 3: a(f"s_add_u32 s23, s23, {128*1024}")
    a("s_barrier")
    a.stamp(11)
    z1_out(ACC2, GR, 1)
    a(f"s_lshl_b32 s23, s20, 4\ns_add_u32 s23, s23, s19\ns_lshl_b32 s23, s23, 7\ns_add_u32 s23, s23, {hx(F_Z2)}")
    a("s_waitcnt vmcnt(0)")
    wave_flag(23)
    a.stamp(12)
    z1_store(ACC2, 0, 1)
    a("s_barrier")
    a(f"s_lshl_b32 s26, s19, 4\ns_add_u32 s26, s26, s20\ns_lshl_b32 s26, s26, 7\ns_add_u32 s26, s26, {hx(F_P1)}")
    p2_role()
    a("s_branch L_sp_comp")
    a("L_cq:")
    curx[:] = [0, 0, 0, 0]; curw[:] = [0, 0]
    a(f"s_and_b32 s23, s17, 1\ns_lshl_b32 s23, s23, 13\ns_lshl_b32 s22, s17, 12\ns_sub_u32 s23, s23, s22")
    for k in range(4): a(f"v_add_u32 v{AX+k}, s23, v{AX+k}")
    a(f"s_lshr_b32 s23, s17, 1\ns_lshl_b32 s23, s23, 6\nv_xor_b32 v{AW}, s23, v{AW}")
    gemm(2, 4, ACC, [False, False, True, True], lambda it: (it % 3) * 3 * UNIT, True, lambda it: True, {0: 3, 2: 4, 5: 5})
    a("s_barrier")
    a.stamp(6)
    GQ = 92
    gate_load(GQ, 2)
    for x in phi_ops([ACC + 2*i for i in range(16)], TMP, CL, CE): a(x)
    for x in pack_ops(ACC, ACC, 64): a(x)
    ONE = TMP
    for i in range(4): a(f"v_mov_b32 v{ONE+i}, 0x3f803f80")
    KVA = ACC + 32; ZA = ACC + 48
    for e in range(4):
        a(f"v_mfma_f32_32x32x16_bf16 {vr(KVA,16)}, {vr(ACC+4*e,4)}, {vr(ACC+16+4*e,4)}, " + ("0" if e == 0 else vr(KVA,16)))
        a(f"v_mfma_f32_32x32x16_bf16 {vr(ZA,16)}, {vr(ACC+4*e,4)}, {vr(ONE,4)}, " + ("0" if e == 0 else vr(ZA,16)))
    a(f"s_and_b32 s23, s17, 1\ns_mul_i32 s23, s23, 4352\ns_lshr_b32 s22, s17, 1\ns_mul_i32 s22, s22, 2176\ns_add_u32 s23, s23, s22\ns_add_u32 s23, s23, {SCR}")
    a(f"v_bfe_u32 v{T+4}, v1, 4, 1\nv_mul_u32_u24 v{T+4}, 1088, v{T+4}\nv_lshrrev_b32 v{T+5}, 5, v1\nv_lshl_add_u32 v{T+4}, v{T+5}, 5, v{T+4}\nv_add_u32 v{T+4}, s23, v{T+4}")
    a(f"v_and_b32 v{T+5}, 15, v1\nv_lshl_add_u32 v{T+6}, v{T+5}, 6, v{T+4}")
    a(f"v_and_b32 v{T+7}, 16, v1\nv_cmp_ne_u32 vcc, 0, v{T+7}")
    for i in range(8): a(f"v_cndmask_b32 v{KVA+i}, v{KVA+i}, v{KVA+8+i}, vcc")
    a(f"ds_write_b128 v{T+6}, {vr(KVA,4)}\nds_write_b128 v{T+6}, {vr(KVA+4,4)} offset:16")
    for i in range(8): a(f"v_cndmask_b32 v{ZA+i}, v{ZA+i}, v{ZA+8+i}, vcc")
    a(f"v_cmp_eq_u32 vcc, 0, v{T+5}\ns_and_saveexec_b64 s[60:61], vcc")
    a(f"ds_write_b128 v{T+4}, {vr(ZA,4)} offset:1024\nds_write_b128 v{T+4}, {vr(ZA+4,4)} offset:1040")
    a("s_mov_b64 exec, -1")
    a("s_waitcnt lgkmcnt(0)\ns_barrier")
    a.stamp(7)
    Q = ACC + 64
    for x in phi_ops([Q + 2*i for i in range(16)], TMP, CL, CE) + pack_ops(Q, Q, 32): a(x)
    fm_store(Q, 2, 32, 4, OFF_PQ)
    a.stamp(8)
    a("s_cmp_eq_u32 s20, 7\ns_cbranch_scc1 L_cq_noz")
    a("s_waitcnt vmcnt(4)")
    z1_out(ACC + 96, GQ, 2); z1_store(ACC + 96, 1, 2)
    a("L_cq_noz:")
    a(f"s_lshl_b32 s26, s19, 4\ns_add_u32 s26, s26, s20\ns_lshl_b32 s26, s26, 7\ns_add_u32 s26, s26, {hx(F_P1 + 8*128)}")
    p2_role()
    a("s_cmp_eq_u32 s20, 7\ns_cbranch_scc1 L_o_entry")

    a("L_sp_comp:")
    def p12_stamp():
        if Asm.STAMPS:
            a.stamp(14); a.stamp_flush(0, wait=False); a("s_mov_b64 exec, -1"); a.stamp_init()
    p12_stamp()
    D = cfg.get("D", 5); AF = 128; ACC = 64; BF = 32; Z1 = 224; AX = 8
    NA = 4 * D + 4
    a(f"s_mov_b32 s8, s{P_BSP}\ns_mov_b32 s9, s{P_BSP+1}\ns_movk_i32 s10, 4096")
    a("v_and_b32 v4, 31, v1\nv_lshlrev_b32 v3, 1, v4\ns_lshl_b32 s23, s19, 8")
    for tt in range(4): a(f"buffer_load_ushort v{16+tt}, v3, s[8:11], s23 offen offset:{tt*64}")
    a("s_lshl_b32 s24, s20, 2\ns_add_u32 s24, s24, s17\ns_lshl_b32 s25, s24, 1\ns_add_u32 s24, s25, s30\ns_lshl_b32 s24, s24, 16")
    a("s_and_b32 s21, s19, 3\ns_lshl_b32 s21, s21, 2")
    frag_addr(AX, 4, 5)
    for k in range(1, 4): a(f"v_xor_b32 v{AX+k}, {32*k}, v{AX}")
    a(f"v_bfe_u32 v3, v1, 2, 3\nv_lshlrev_b32 v3, 7, v3\nv_and_b32 v7, 3, v1\nv_lshl_add_u32 v3, v7, 2, v3\ns_lshl_b32 s34, s20, 11\ns_lshl_b32 s23, s30, 10\ns_add_u32 s34, s34, s23\ns_add_u32 s34, s34, {hx(F_Z2)}")
    a("buffer_load_dword v7, v3, s[12:15], s34 offen sc1")
    a("s_waitcnt vmcnt(0)")
    wave_flag(26)
    a("s_barrier")
    a.stamp(1)
    def bread(g, tt): return f"ds_read_b128 {vr(BF+16*(g%2)+4*tt,4)}, v{AX+g%4} offset:{tt*4096}"
    for g in range(2):
        for tt in range(4): a(bread(g, tt))
    a("v_cmp_ne_u32 vcc, s28, v7\ns_cbranch_vccz L_sp_go")
    poll(3, 34, 7)
    a("L_sp_go:")
    a.stamp(2)
    def aload(g):
        sl, ks = divmod(g, 4); t = ""
        if ks == 0: t = f"s_add_u32 s23, s21, {sl}\ns_and_b32 s23, s23, 15\ns_lshl_b32 s23, s23, 12\ns_add_u32 s23, s23, s24\n"
        return t + f"buffer_load_dwordx4 {vr(AF+4*(g%NA),4)}, v2, s[12:15], s23 offen offset:{ks*1024}" + (" sc1" if cfg.get("asc1", 1) else "")
    order = []
    PRE = cfg.get("apre", 10)
    for g in range(PRE): a(aload(g)); order.append(g)
    a("s_cmp_eq_u32 s30, 0\ns_cselect_b32 s22, -1, 0")
    for tt in range(4): a(f"v_lshlrev_b32 v{16+tt}, 16, v{16+tt}\nv_and_b32 v{16+tt}, s22, v{16+tt}")
    for tt in range(4):
        for r_ in range(16): a(f"v_mov_b32 v{ACC+16*tt+r_}, v{16+tt}")
    a(f"s_mul_i32 s26, s19, {4*56}\ns_add_u32 s26, s26, s25\ns_lshl_b32 s26, s26, 10")
    a("s_lshl_b32 s32, s19, 2\ns_lshl_b32 s22, s30, 1\ns_add_u32 s32, s32, s22\ns_add_u32 s32, s32, s18")
    OFR = 128
    def oload(k): return (f"s_lshl_b32 s22, s32, 5\ns_lshl_b32 s35, s17, 3\ns_add_u32 s22, s22, s35\ns_lshl_b32 s22, s22, 10\ns_add_u32 s22, s22, {hx(OFF_O)}\n" if k == 0 else ("s_add_u32 s22, s22, 4096\n" if k == 4 else "")) + \
        f"buffer_load_dwordx4 {vr(OFR+4*k,4)}, v2, s[12:15], s22 offen offset:{(k%4)*1024} sc1"
    nxt = PRE; zk = 0
    assert NA == 24
    for g in range(64):
        a(f"s_waitcnt vmcnt({len(order) - 1 - order.index(g)})")
        for tt in range(4):
            a(f"s_waitcnt lgkmcnt({min(7, (63 - g) * 4 + 3 - tt)})")
            a(f"v_mfma_f32_32x32x16_bf16 {vr(ACC+16*tt,16)}, {vr(AF+4*(g%NA),4)}, {vr(BF+16*(g%2)+4*tt,4)}, {vr(ACC+16*tt,16)}")
            g2 = g + 2
            if g2 < 64:
                if tt == 0 and g2 % 8 == 0:
                    a("s_barrier")
                    if (g2 // 8) % 2 == 1: a.stamp(3 + g2 // 16)
                a(bread(g2, tt))
                if tt == 3 and g2 + 4 < 64:
                    s2 = g2 // 4 + 1
                    a(f"v_add_u32 v{AX+g2%4}, {UNIT if (s2 % 10) else -UNIT * 9}, v{AX+g2%4}")
            if g == 0 and tt >= 2:
                a(f"v_add_u32 v{AX+tt-2}, {UNIT}, v{AX+tt-2}")
            if tt in (1, 2) and nxt < 64 and nxt <= g + 4 * D and (tt == 1 or nxt < g + 4 * D):
                a(aload(nxt)); order.append(nxt); nxt += 1
            elif tt == 1 and nxt == 64 and zk < 8 and g >= 44:
                if zk == 0: a(f"s_add_u32 s23, s26, {hx(OFF_Z1)}")
                a(f"buffer_load_dwordx4 {vr(Z1+4*zk,4)}, v2, s[12:15], s23 offen offset:{(zk%2)*1024} sc1")
                if zk % 2 == 1: a(f"s_add_u32 s23, s23, {56*1024}")
                order.append(("Z", zk)); zk += 1
            elif tt == 1 and g >= 56:
                a(oload(g - 56)); order.append(("O", g - 56))
    assert zk == 8
    a.stamp(11)
    a("s_waitcnt vmcnt(8)")
    a(f"s_mul_i32 s23, s30, {hx(OFF_U1-OFF_U0)}\ns_add_u32 s23, s23, s26\ns_add_u32 s23, s23, {hx(OFF_U0)}")
    T2 = 16
    for tt in range(4):
        for p in range(8):
            z = Z1 + 8*tt + p; t = T2 + 2 * (p % 4); c = ACC + 16*tt + 2*p
            a(f"v_lshlrev_b32 v{t}, 16, v{z}\nv_and_b32 v{t+1}, 0xffff0000, v{z}")
            a(f"v_pk_mul_f32 {vr(c,2)}, {vr(c,2)}, {vr(t,2)}")
            a(f"v_cvt_pk_bf16_f32 v{z}, v{c}, v{c+1}")
        for u in range(2):
            a(f"buffer_store_dwordx4 {vr(Z1+8*tt+4*u,4)}, v2, s[12:15], s23 offen offset:{u*1024} sc1")
        if tt < 3: a(f"s_add_u32 s23, s23, {56*1024}")
    a("s_barrier")
    a.stamp(12)
    a("s_waitcnt vmcnt(8)")
    a("s_branch L_apart")
    a("L_sp_help:")
    p12_stamp()
    S = Stream()
    for sl in range(8): S.add(("s", sl), 4)
    if Asm.STAMPS: S.add("st", 1)
    a("s_waitcnt vmcnt(16)\ns_barrier")
    def hs(sl): h_slice(sl); S.add(("s", sl), 4)
    hs(8); hs(9)
    a("s_barrier"); hs(10)
    S.wait(("s", 5)); a("s_barrier"); hs(11); hs(12)
    if cfg.get("ptouch", 1):
        a("v_and_b32 v6, 255, v0\ns_and_b32 s23, s19, 3\ns_mul_i32 s34, s23, 224\nv_add_u32 v8, s34, v6\nv_lshlrev_b32 v8, 10, v8\ns_lshl_b32 s34, s31, 7")
        a("buffer_load_dword v10, v8, s[8:11], s34 offen")
        a("v_and_b32 v8, 127, v6\nv_lshlrev_b32 v8, 10, v8\ns_lshl_b32 s23, s23, 17\ns_add_u32 s34, s34, s23")
        a("buffer_load_dword v11, v8, s[96:99], s34 offen")
        S.add("t", 2)
    S.wait(("s", 7)); a("s_barrier"); hs(13); hs(14)
    S.wait(("s", 9)); a("s_barrier")
    hs(15); h_wo(0)
    a(f"s_lshl_b32 s23, s19, 4\ns_add_u32 s23, s23, s20\ns_lshl_b32 s23, s23, 7\ns_add_u32 s23, s23, {hx(F_P1)}\nv_bfe_u32 v8, v1, 2, 1\nv_lshlrev_b32 v8, 10, v8\nv_and_b32 v9, 3, v1\nv_lshl_add_u32 v8, v9, 2, v8")
    poll(8, 23, 9)
    a("s_barrier"); h_wo(1); h_wo(2)
    a("s_barrier"); h_wo(3); h_piece(0)
    a(f"s_lshl_b32 s23, s19, 1\ns_add_u32 s23, s23, s30\ns_lshl_b32 s23, s23, 10\ns_add_u32 s23, s23, {hx(F_P2 + 7*128)}\nv_mov_b32 v8, 0")
    if cfg.get("opoll", 1): poll(8, 23, 9)
    else: a("s_waitcnt vmcnt(0)")
    a("s_barrier")
    a("L_h_tail:")
    a("s_lshl_b32 s32, s19, 2\ns_lshl_b32 s22, s30, 1\ns_add_u32 s32, s32, s22\ns_add_u32 s32, s32, s18\nv_lshlrev_b32 v2, 4, v1")
    for k in range(8): a(oload(k))
    h_piece(1); h_piece(2)
    a("s_barrier")
    h_piece(3); h_piece(4); h_piece(5)
    a("s_waitcnt vmcnt(20)")
    a("s_branch L_apart")
    a("L_misc:")
    a("s_waitcnt lgkmcnt(0)")
    ws_setup()
    a(f"s_mov_b32 s4, s{P_X}\ns_mov_b32 s5, s{P_X+1}\ns_mov_b32 s6, {hx(2048*512*2)}")
    a(f"s_mov_b32 s8, s{P_GW}\ns_mov_b32 s9, s{P_GW+1}\ns_movk_i32 s10, 1024")
    a("v_mov_b32 v4, 0\nv_mov_b32 v5, 0\nv_mov_b32 v6, 0\nv_mov_b32 v7, 0\nv_lshlrev_b32 v2, 4, v0")
    a(f"s_mul_i32 s23, s19, 2176\ns_add_u32 s23, s23, {hx(OFF_KV)}")
    a("v_cmp_gt_u32 vcc, 136, v0\ns_and_saveexec_b64 s[60:61], vcc\ns_cbranch_execz L_m_nz")
    a("buffer_store_dwordx4 v[4:7], v2, s[12:15], s23 offen sc1")
    a("L_m_nz:\ns_mov_b64 exec, -1")
    a("v_lshlrev_b32 v2, 4, v1")
    a("buffer_load_dwordx4 v[8:11], v2, s[8:11], 0 offen")
    a("s_lshl_b32 s23, s19, 17\ns_lshl_b32 s34, s16, 14\ns_add_u32 s23, s23, s34")
    for i in range(16):
        if i % 4 == 0 and i: a("s_add_u32 s23, s23, 4096")
        a(f"buffer_load_dwordx4 {vr(16+4*i,4)}, v2, s[4:7], s23 offen offset:{(i%4)*1024}")
    tag_ready()
    a("s_waitcnt vmcnt(0)")
    for i in range(16): a(f"v_dot2_f32_bf16 v{96+i}, v{16+4*i}, v8, 0")
    for k in range(1, 4):
        for i in range(16): a(f"v_dot2_f32_bf16 v{96+i}, v{16+4*i+k}, v{8+k}, v{96+i}")
    a("s_nop 2")
    for sh in ("row_shr:1", "row_shr:2", "row_shr:4", "row_shr:8", "row_bcast:15 row_mask:0xa", "row_bcast:31 row_mask:0xc"):
        for i in range(16):
            a(f"v_add_f32_dpp v{96+i}, v{96+i}, v{96+i} {sh}" + (" row_mask:0xf" if "mask" not in sh else "") + " bank_mask:0xf")
    a("v_mov_b32 v8, 0")
    for i in range(16): a(f"v_readlane_b32 s34, v{96+i}, 63\nv_writelane_b32 v8, s34, {i}")
    a(f"v_mul_f32 v8, {hx(f2u(-LOG2E))}, v8\nv_exp_f32 v8, v8\nv_add_f32 v8, 1.0, v8\nv_rcp_f32 v8, v8")
    a(f"s_lshl_b32 s23, s19, 9\ns_lshl_b32 s34, s16, 6\ns_add_u32 s23, s23, s34\ns_add_u32 s23, s23, {hx(OFF_GATE)}")
    a("v_lshlrev_b32 v2, 2, v1\ns_mov_b64 exec, 0xffff")
    a("buffer_store_dword v8, v2, s[12:15], s23 offen sc1")
    a("s_mov_b64 exec, -1\ns_waitcnt vmcnt(0)\ns_barrier")
    a("s_cmp_lg_u32 s16, 1\ns_cbranch_scc1 L_m_f")
    a(f"s_lshl_b32 s23, s19, 7\ns_add_u32 s23, s23, {hx(F_ZERO)}")
    set_flag(23)
    a("L_m_f:")
    a(f"s_lshl_b32 s26, s19, 11\ns_add_u32 s26, s26, {hx(F_P1 + 7*128)}")
    p2_role()
    a("L_o_entry:")
    p12_stamp()
    a("s_waitcnt vmcnt(0)")
    wave_flag(26)
    h2_setup()
    if cfg.get("mtouch", 1):
        a("s_cmp_lg_u32 s30, 1\ns_cbranch_scc1 L_o_nt")
        a("v_lshlrev_b32 v8, 7, v0\ns_lshl_b32 s23, s19, 16")
        a("buffer_load_dword v90, v8, s[8:11], s23 offen\nbuffer_load_dword v91, v8, s[96:99], s23 offen")
        a("L_o_nt:")
    a("s_barrier")
    a("s_cmp_lt_u32 s16, 4\ns_cbranch_scc1 L_o_nol")
    for p in range(4): h_wo(p)
    h_piece(0)
    a("L_o_nol:")
    a("v_lshrrev_b32 v10, 4, v1\nv_lshlrev_b32 v10, 11, v10\nv_and_b32 v7, 15, v1\nv_lshl_add_u32 v10, v7, 4, v10\nv_and_b32 v7, 14, v1\nv_mul_u32_u24 v7, 48, v7\nv_add_u32 v10, v10, v7")
    a("s_cmp_lg_u32 s16, 0\ns_cbranch_scc1 L_o_w")
    a("L_o_poll:")
    for k in range(4):
        a(f"s_mov_b32 s25, {hx(F_P1 + 8*128 + k*4*2048)}")
        a(f"buffer_load_dwordx4 {vr(16+4*k,4)}, v10, s[12:15], s25 offen sc1")
    a("s_add_u32 s33, s33, 1\ns_waitcnt vmcnt(0)")
    for k in range(16): a(f"v_xor_b32 v{16+k}, s28, v{16+k}")
    for k in range(1, 16): a(f"v_or_b32 v16, v16, v{16+k}")
    a(f"v_cmp_ne_u32 vcc, 0, v16\ns_cmp_gt_u32 s33, {SPIN_MAX}\ns_cbranch_scc1 L_o_w\ns_cbranch_vccz L_o_w\ns_sleep 8\ns_branch L_o_poll")
    a("L_o_w:")
    a("s_barrier")
    a.stamp(1)
    a("s_lshl_b32 s32, s19, 2\ns_lshl_b32 s22, s30, 1\ns_add_u32 s32, s32, s22\ns_add_u32 s32, s32, s18\nv_lshlrev_b32 v11, 4, v1")
    a("v_and_b32 v4, 31, v1\nv_lshlrev_b32 v12, 2, v4\nv_min_u32 v4, 16, v4\nv_lshrrev_b32 v5, 5, v1\nv_lshlrev_b32 v5, 5, v5\nv_lshl_add_u32 v4, v4, 6, v5")
    a(f"s_lshl_b32 s23, s32, 7\ns_add_u32 s23, s23, {hx(OFF_GATE)}")
    a("buffer_load_dword v13, v12, s[12:15], s23 offen sc1")
    a(f"s_mul_i32 s23, s17, {8*1088}\ns_add_u32 s23, s23, {hx(OFF_KV)}")
    for h in range(8):
        if h % 2 == 0 and h: a(f"s_add_u32 s23, s23, {2*1088}")
        a(f"buffer_load_dwordx4 {vr(16+8*h,4)}, v4, s[12:15], s23 offen offset:{(h%2)*1088} sc1")
        a(f"buffer_load_dwordx4 {vr(20+8*h,4)}, v4, s[12:15], s23 offen offset:{(h%2)*1088+16} sc1")
    a(f"s_lshl_b32 s22, s32, 5\ns_lshl_b32 s35, s17, 3\ns_add_u32 s22, s22, s35\ns_lshl_b32 s22, s22, 10\ns_add_u32 s23, s22, {hx(OFF_PQ)}")
    for h in range(8):
        if h == 4: a("s_add_u32 s23, s23, 4096")
        a(f"buffer_load_dwordx4 {vr(96+4*h,4)}, v11, s[12:15], s23 offen offset:{(h%4)*1024} sc1")
    a(f"v_mov_b32 v14, {hx(f2u(1e-6))}\ns_add_u32 s23, s22, {hx(OFF_O)}")
    a.stamp(3)
    a("s_waitcnt vmcnt(0)")
    a.stamp(4)
    for h in range(8):
        for x in pack_ops(16+8*h, 16+8*h, 8): a(x)
    for h in range(8):
        a(f"v_mfma_f32_32x32x16_bf16 {vr(128+16*h,16)}, {vr(16+8*h,4)}, {vr(96+4*h,4)}, 0")
    for h in range(8):
        n = 128 + 16 * h
        a(f"v_add_f32 v{n+8}, v{n+8}, v14\nv_rcp_f32 v{n+8}, v{n+8}\nv_mul_f32 v{n+8}, v{n+8}, v13")
        for i in range(8): a(f"v_mul_f32 v{n+i}, v{n+i}, v{n+8}")
        for x in pack_ops(n, n, 8): a(x)
        if h == 4: a("s_add_u32 s23, s23, 4096")
        a(f"buffer_store_dwordx4 {vr(n,4)}, v11, s[12:15], s23 offen offset:{(h%4)*1024} sc1")
    a.stamp(5)
    a("s_waitcnt vmcnt(0)\ns_barrier")
    a.stamp(2)
    a("s_cmp_lg_u32 s16, 0\ns_cbranch_scc1 L_o_nf2")
    a(f"s_lshl_b32 s23, s19, 1\ns_add_u32 s23, s23, s30\ns_lshl_b32 s23, s23, 10\ns_add_u32 s23, s23, {hx(F_P2 + 7*128)}")
    set_flag(23)
    a("s_cmp_lg_u32 s19, 0\ns_cbranch_scc1 L_o_nf2\ns_cmp_lg_u32 s30, 1\ns_cbranch_scc1 L_o_nf2")
    a("v_lshrrev_b32 v10, 3, v1\nv_lshlrev_b32 v10, 11, v10\nv_and_b32 v7, 7, v1\nv_lshl_add_u32 v10, v7, 7, v10")
    a(f"s_mov_b32 s25, {hx(F_P1)}")
    poll(10, 25, 8, (0, 8*2048), sleep=8)
    a(f"s_mov_b32 s25, {hx(OFF_EPOCH)}")
    set_flag(25)
    a("L_o_nf2:")
    a("s_cmp_ge_u32 s16, 4\ns_cbranch_scc1 L_h_tail")
    a("v_lshlrev_b32 v2, 4, v1")
    for k in range(8): a(oload(k))
    a("s_barrier")
    a("s_waitcnt vmcnt(0)")

    a("L_apart:")
    ACC = 32; WF = 8; AW = 24; U = 64
    tr_addr(AW + 2, 26 + 2, 27 + 2)
    a(f"s_lshl_b32 s23, s17, 14\ns_add_u32 s23, s23, {WO_UNIT[0]*UNIT}\nv_add_u32 v{AW}, s23, v{AW+2}\nv_xor_b32 v{AW+1}, 64, v{AW}")
    def wrd(slot, off):
        w = WF + 8 * slot
        for dt in range(2):
            a(f"ds_read_b64_tr_b16 {vr(w+4*dt,2)}, v{AW+dt} offset:{off}\nds_read_b64_tr_b16 {vr(w+4*dt+2,2)}, v{AW+dt} offset:{off+512}")
    wrd(0, 0); wrd(1, 2048)
    for k in range(8):
        a(f"s_waitcnt lgkmcnt({4 if k < 7 else 0})")
        for dt in range(2):
            a(f"v_mfma_f32_32x32x16_bf16 {vr(ACC+16*dt,16)}, {vr(WF+8*(k%2)+4*dt,4)}, {vr(OFR+4*k,4)}, " + ("0" if k == 0 else vr(ACC+16*dt,16)))
        if k + 2 < 8: wrd(k % 2, (k + 2) * 2048)
    a(f"s_lshl_b32 s23, s17, 12\nv_add_u32 v{AW}, s23, v{AW+2}\nv_xor_b32 v{AW+1}, 64, v{AW}")
    a("v_and_b32 v6, 15, v1\nv_and_b32 v7, 7, v1\nv_add_u32 v28, -1, v6\nv_cmp_eq_u32 vcc, 7, v7\nv_cndmask_b32 v6, v6, v28, vcc\nv_lshlrev_b32 v6, 7, v6\ns_lshl_b32 s23, s17, 2\nv_add_u32 v6, s23, v6")
    a(f"s_lshl_b32 s26, s19, 11\ns_add_u32 s26, s26, {hx(F_P2)}")
    a(f"s_mul_i32 s25, s32, 56\ns_lshl_b32 s23, s17, 1\ns_add_u32 s25, s25, s23\ns_lshl_b32 s25, s25, 10\ns_add_u32 s25, s25, {hx(OFF_U0)}")
    a.stamp(13)
    a("s_waitcnt vmcnt(0)")
    a("s_cmp_ge_u32 s16, 4\ns_cbranch_scc1 L_p3_nf\ns_cmp_eq_u32 s20, 7\ns_cbranch_scc1 L_p3_nf")
    a("s_lshl_b32 s23, s30, 3\ns_add_u32 s23, s23, s20\ns_lshl_b32 s23, s23, 7\ns_add_u32 s23, s23, s26")
    wave_flag(23)
    a("L_p3_nf:")
    a("s_barrier")
    if Asm.STAMPS:
        a.stamp(14); a.stamp_flush(1, wait=False); a("s_mov_b64 exec, -1"); a.stamp_init()
    a("s_cmp_lt_u32 s16, 4\ns_cbranch_scc1 L_p3_np")
    h_piece(6)
    a("L_p3_np:")
    a(f"s_mov_b32 s8, s{P_OUT}\ns_mov_b32 s9, s{P_OUT+1}\ns_mov_b32 s10, {hx(2048*512*2)}")
    curp = [0]
    def wread(k):
        p, e = divmod(k, 2)
        if p != curp[0]:
            d = (PIECE_UNIT[p] - PIECE_UNIT[curp[0]]) * UNIT; curp[0] = p
            a(f"v_add_u32 v{AW}, {d}, v{AW}\nv_add_u32 v{AW+1}, {d}, v{AW+1}")
        wrd(k % 2, e * 2048)
    wread(0); wread(1)
    poll(6, 26, 7)
    a.stamp(1)
    def uload(k):
        p, e = divmod(k, 2)
        if e == 0: a(f"s_add_u32 s23, s31, {p}\ns_cmp_ge_u32 s23, 7\ns_cselect_b32 s24, 7, 0\ns_sub_u32 s23, s23, s24\ns_lshl_b32 s23, s23, 13\ns_add_u32 s23, s23, s25\ns_add_u32 s24, s23, {hx(OFF_U1-OFF_U0)}")
        a(f"buffer_load_dwordx4 {vr(U+8*k,4)}, v2, s[12:15], s23 offen offset:{e*1024} sc1")
        a(f"buffer_load_dwordx4 {vr(U+8*k+4,4)}, v2, s[12:15], s24 offen offset:{e*1024} sc1")
    UL = cfg.get("ulook", 4)
    for k in range(UL): uload(k)
    a("v_lshrrev_b32 v4, 3, v1\nv_and_b32 v5, 7, v1\ns_lshl_b32 s22, s17, 3\nv_add_u32 v4, s22, v4")
    a("v_and_b32 v176, 31, v1\nv_lshrrev_b32 v177, 5, v1\nv_lshlrev_b32 v177, 1, v177\nv_xor_b32 v177, v177, v5\nv_lshlrev_b32 v177, 4, v177\nv_lshl_add_u32 v176, v176, 8, v177")
    a("s_lshl_b32 s22, s16, 13\nv_add_u32 v176, s22, v176")
    a("v_xor_b32 v177, 16, v176\nv_xor_b32 v178, 64, v176\nv_xor_b32 v179, 0x50, v176")
    a("v_lshlrev_b32 v181, 1, v5\nv_and_b32 v180, 7, v4\nv_xor_b32 v181, v181, v180\nv_lshlrev_b32 v181, 4, v181\nv_lshl_add_u32 v180, v4, 8, v181")
    a("s_lshl_b32 s22, s18, 15\nv_add_u32 v180, s22, v180\nv_xor_b32 v181, 16, v180")
    a("v_lshlrev_b32 v6, 10, v4\nv_lshl_add_u32 v6, v5, 4, v6")
    a("s_lshl_b32 s22, s32, 15\ns_lshl_b32 s35, s31, 7\ns_add_u32 s22, s22, s35")
    a.stamp(2)
    for k in range(14):
        nl = min(k + UL, 14)
        a(f"s_waitcnt vmcnt({2*(nl-1-k)}) lgkmcnt({4 if k < 13 else 0})")
        w = WF + 8 * (k % 2)
        for uu in range(2):
            for dt in range(2):
                a(f"v_mfma_f32_32x32x16_bf16 {vr(ACC+16*dt,16)}, {vr(w+4*dt,4)}, {vr(U+8*k+4*uu,4)}, {vr(ACC+16*dt,16)}")
                if uu == 0 and dt == 0 and k + UL < 14: uload(k + UL)
        if k == 2: a("s_barrier")
        if k + 2 < 14: wread(k + 2)
    a.stamp(3)
    a("s_barrier")
    for dt in range(2):
        for u in range(2):
            for q in range(2):
                a(f"ds_write_b128 v{176+2*u+q}, {vr(ACC+16*dt+8*u+4*q,4)} offset:{dt*128}")
    a("s_waitcnt lgkmcnt(0)\ns_barrier")
    a.stamp(4)
    for k in range(4):
        a(f"ds_read_b128 {vr(64+8*k,4)}, v180 offset:{k*8192}\nds_read_b128 {vr(68+8*k,4)}, v181 offset:{k*8192}")
    a("s_waitcnt lgkmcnt(4)")
    for p in range(4): a(f"v_pk_add_f32 {vr(64+2*p,2)}, {vr(64+2*p,2)}, {vr(72+2*p,2)}")
    a("s_waitcnt lgkmcnt(0)")
    for p in range(4): a(f"v_pk_add_f32 {vr(80+2*p,2)}, {vr(80+2*p,2)}, {vr(88+2*p,2)}")
    for p in range(4): a(f"v_pk_add_f32 {vr(64+2*p,2)}, {vr(64+2*p,2)}, {vr(80+2*p,2)}")
    for x in pack_ops(64, 64, 8): a(x)
    a("buffer_store_dwordx4 v[64:67], v6, s[8:11], s22 offen" + (" sc1" if cfg.get("outsc1", 1) else ""))
    a.stamp(14)
    a.stamp_flush(2)
    a("L_end:\ns_endpgm\nL_codeend:")
    return a

def build(path, cfg, stamps=None):
    Asm.STAMPS = stamps is not None
    Asm.STAMP_OP = "s_memtime" if stamps == "cy" else "s_memrealtime"
    a = gen(KNAME, cfg)
    src = "; @launch grid=(256,1,1) block=(512,1,1) lds=163840\n" + HDR + a.text() + '.section .rodata,"a"\n' + kd(KNAME)
    open(path, "w").write(src)

if __name__ == "__main__":
    cfg = {}; pre = "m"
    for kv in sys.argv[1:]:
        k, v = kv.split("=")
        if k == "o": pre = v
        else: cfg[k] = int(v)
    build(f"dev/{pre}.s", cfg); build(f"dev/{pre}_st.s", cfg, "st"); build(f"dev/{pre}_cy.s", cfg, "cy")
```
